```python
import torch

def _softmax(x, axis=-1):
    return torch.softmax(x, dim=axis)
def _gelu(x):
    return torch.nn.functional.gelu(x, approximate="tanh")
def _silu(x):
    return torch.nn.functional.silu(x)
def _sigmoid(x):
    return torch.sigmoid(x)
def _layernorm(x, axis=-1, eps=1e-5):
    m = x.mean(dim=axis, keepdim=True)
    v = x.var(dim=axis, keepdim=True, unbiased=False)
    return (x - m) / torch.sqrt(v + eps)
def _scatter_add(tgt, idx, src, axis=0):
    return tgt.clone().index_add_(axis, idx, src)
def _segment_sum(src, seg, n):
    out = torch.zeros((n,) + src.shape[1:], dtype=src.dtype)
    return out.index_add_(0, seg, src)
def _pad(x, pw):
    flat = tuple(v for pair in reversed(pw) for v in pair)
    return torch.nn.functional.pad(x, flat)

kernel_name = 'concat_heads__ssm_conv_s5__grouped_kv_mqa__prompt'

def setup_inputs():

    _w = (lambda a: (lambda t: t.to(torch.bfloat16) if t.is_floating_point() else t)(torch.as_tensor(a)))
    def _A_setup():
        B, S, D = 1, 2048, 1024
        P = D
        Lambda_re = -0.5 * (lambda _x: torch.exp(torch.as_tensor(_x)))((lambda *s: torch.randn(*s, dtype=torch.bfloat16) * 0.4)(P))
        Lambda_im = (lambda *s: torch.randn(*s, dtype=torch.bfloat16) * 0.4)(P) * 1.0
        B_re = (lambda *s: torch.randn(*s, dtype=torch.bfloat16) * 0.4)(P, D) * (D ** -0.5)
        B_im = (lambda *s: torch.randn(*s, dtype=torch.bfloat16) * 0.4)(P, D) * (D ** -0.5)
        C_re = (lambda *s: torch.randn(*s, dtype=torch.bfloat16) * 0.4)(D, P) * (P ** -0.5)
        C_im = (lambda *s: torch.randn(*s, dtype=torch.bfloat16) * 0.4)(D, P) * (P ** -0.5)
        log_dt = (lambda *s: torch.randn(*s, dtype=torch.bfloat16) * 0.4)(P) * 0.3 - 2.0
        Dskip = (lambda *s: torch.randn(*s, dtype=torch.bfloat16) * 0.05)(D)
        return {
            "x": _w((lambda *s: torch.randn(*s, dtype=torch.bfloat16) * 0.05)(B, S, D)),
            "Lambda_re": _w(Lambda_re),
            "Lambda_im": _w(Lambda_im),
            "B_re": _w(B_re),
            "B_im": _w(B_im),
            "C_re": _w(C_re),
            "C_im": _w(C_im),
            "log_dt": _w(log_dt),
            "Dskip": _w(Dskip),
        }
    _A_in = _A_setup()

    def _B_setup():
        B, S, D, H = 1, 2048, 1024, 32
        Dh = D // H
        return {
            "x": _w((lambda *s: torch.randn(*s, dtype=torch.bfloat16) * 0.05)(B, S, D)),
            "wq": _w((lambda *s: torch.randn(*s, dtype=torch.bfloat16) * 0.8)(D, H * Dh)),
            "wk": _w((lambda *s: torch.randn(*s, dtype=torch.bfloat16) * 0.8)(D, Dh)),
            "wv": _w((lambda *s: torch.randn(*s, dtype=torch.bfloat16) * 0.05)(D, Dh)),
            "wo": _w((lambda *s: torch.randn(*s, dtype=torch.bfloat16) * 0.05)(H * Dh, D)),
        }
    _B_in = _B_setup()

    return {
        "A_x": _A_in["x"],
        "A_Lambda_re": _A_in["Lambda_re"],
        "A_Lambda_im": _A_in["Lambda_im"],
        "A_B_re": _A_in["B_re"],
        "A_B_im": _A_in["B_im"],
        "A_C_re": _A_in["C_re"],
        "A_C_im": _A_in["C_im"],
        "A_log_dt": _A_in["log_dt"],
        "A_Dskip": _A_in["Dskip"],
        "B_x": _B_in["x"],
        "B_wq": _B_in["wq"],
        "B_wk": _B_in["wk"],
        "B_wv": _B_in["wv"],
        "B_wo": _B_in["wo"],
    }

def reference(A_x, A_Lambda_re, A_Lambda_im, A_B_re, A_B_im, A_C_re, A_C_im, A_log_dt, A_Dskip, B_x, B_wq, B_wk, B_wv, B_wo):
    def _A_ref(x, Lambda_re, Lambda_im, B_re, B_im, C_re, C_im, log_dt, Dskip):
        Bsz, L, H = x.shape
        Lam = Lambda_re + 1j * Lambda_im
        Bmat = B_re + 1j * B_im
        Cmat = C_re + 1j * C_im
        dt = torch.exp(log_dt)
        Lam_bar = torch.exp(dt * Lam)
        B_bar = ((Lam_bar - 1.0) / Lam)[:, None] * Bmat
        Bu = torch.einsum("bld,pd->blp", x + 0j, B_bar)
        h = torch.zeros_like(Bu[:, 0, :])
        hs = []
        for t in range(L):
            h = Lam_bar[None, :] * h + Bu[:, t, :]
            hs.append(h)
        hseq = torch.stack(hs, 1)
        y = 2.0 * torch.einsum("blp,dp->bld", hseq, Cmat).real + x * Dskip[None, None, :]
        return y

    def _B_ref(x, wq, wk, wv, wo):
        B, S, D = x.shape
        H = 32
        Dh = D // H
        q = (lambda x, *d: x.permute(*d))((x @ wq).reshape(B, S, H, Dh), 0, 2, 1, 3)
        k = x @ wk
        v = x @ wv
        scores = torch.einsum("bhqd,bkd->bhqk", q, k) * (Dh ** -0.5)
        p = _softmax(scores, axis=-1)
        o = torch.einsum("bhqk,bkd->bhqd", p, v)
        return (lambda x, *d: x.permute(*d))(o, 0, 2, 1, 3).reshape(B, S, H * Dh) @ wo

    a = _A_ref(A_x, A_Lambda_re, A_Lambda_im, A_B_re, A_B_im, A_C_re, A_C_im, A_log_dt, A_Dskip)
    b = _B_ref(B_x, B_wq, B_wk, B_wv, B_wo)
    return torch.concatenate([a, b], axis=-1)
```

```python
import sys, math

NAME = "concat_heads__ssm_conv_s5__grouped_kv_mqa__prompt"

class Cfg:
    prof = False
    mixed = False
    spin = 400000
    force_slow = False

WS_FKV = 0x0000
WS_FQ  = 0x0400
WS_FE  = 0x0800
WS_FH  = 0x0C00
WS_FO  = 0x1000
WS_FEND = 0x1400
WS_KV  = 0x10000
WS_E   = 0x60000
WS_Q   = 0x100000
WS_O   = 0x400000
WS_H   = 0x800000
WS_PROF = 0x1000000
WS_SIZE = 0x10000000

P_XA, P_LRE, P_LIM, P_BRE, P_BIM, P_CRE, P_CIM, P_LDT = 4, 6, 8, 10, 12, 14, 16, 18
P_DSK, P_XB, P_WQ, P_WK, P_WV, P_WO, P_OUT, P_DBG, P_WS = 20, 22, 24, 26, 28, 30, 32, 34, 36
S_W8, S_A, S_B = 38, 39, 3
R_WS, R_A, R_B, R_C, R_OUT, R_DBG, R_KV = 40, 44, 48, 52, 56, 60, 64
S_TC, S_CB = 68, 69
S_CNT, S_K0, S_K1, S_M0A, S_M0B, S_SLOT, S_SPIN = 70, 71, 72, 73, 74, 75, 76
S_T0, S_T1, S_T2, S_T3 = 77, 78, 79, 80
S_LW = 81
S_PROF = 84

RING = [0x20000, 0x18000, 0x10000]
LDS_BYTES = 163840

V_LANE = 0
VT = [1, 2, 3, 4, 5, 6, 7]
V_AD = 8
V_KVOFF, V_CUR, V_NXT, V_IDX = 36, 37, 38, 39
V_ONES, V_L, V_O, V_Q = 40, 44, 48, 64
V_K0, V_K1, V_V0, V_V1 = 72, 76, 80, 84
V_S = [88, 104]
V_PAR = 120
V_ACC = 128
V_FR = 192


def vr(a, n): return f"v[{a}:{a+n-1}]"
def sr(a, n=4): return f"s[{a}:{a+n-1}]"


class E:
    def __init__(self, cfg):
        self.L = []; self.cfg = cfg; self.uid = 0
    def __call__(self, s):
        if isinstance(s, (list, tuple)):
            for x in s: self(x)
        elif s.endswith(":"): self.L.append(s)
        else: self.L.append("    " + s)
    def lab(self, p):
        self.uid += 1; return f"L_{p}_{self.uid}"
    def srd(self, r, p, size):
        self(f"s_mov_b32 s{r}, s{p}"); self(f"s_mov_b32 s{r+1}, s{p+1}")
        self(f"s_mov_b32 s{r+2}, {size:#x}"); self(f"s_mov_b32 s{r+3}, 0x20000")
    def stamp(self, i):
        if not self.cfg.prof: return
        self("s_memtime s[100:101]"); self("s_waitcnt lgkmcnt(0)"); self(f"s_mov_b32 s{S_PROF+i}, s100")
    def rstamp(self, i):
        if not self.cfg.prof: return
        self("s_memrealtime s[100:101]"); self("s_waitcnt lgkmcnt(0)"); self(f"s_mov_b32 s{S_PROF+i}, s100")


def inter(m, other, front=None):
    n = front or len(m); L = []; k = 0
    for i, x in enumerate(m):
        L.append(x)
        e = min(len(other), (len(other) * (i + 1) + n - 1) // n)
        L += other[k:e]; k = e
    return L


def mfma(d, a, b, c=None):
    c = vr(d, 16) if c is None else c
    return f"v_mfma_f32_32x32x16_bf16 {vr(d,16)}, {vr(a,4)}, {vr(b,4)}, {c}"


def poll(e, srd, soff, nlanes, width, vt, stride=None, lim=None):
    stride = 4 * width if stride is None else stride
    lp, dn = e.lab("poll"), e.lab("pdone")
    a = vt; d = vt + 1 + ((vt + 1) & 1)
    e(f"v_mul_u32_u24 v{a}, {stride}, v{V_LANE}")
    e(f"s_mov_b32 s{S_SPIN}, {e.cfg.spin}")
    e(lp + ":")
    ld = {1: "buffer_load_dword", 4: "buffer_load_dwordx4"}[width]
    dst = f"v{d}" if width == 1 else vr(d, 4)
    e(f"{ld} {dst}, v{a}, {sr(srd)}, {soff} offen sc1")
    e("s_waitcnt vmcnt(0)")
    if width == 4:
        e(f"v_and_b32 v{d}, v{d}, v{d+1}"); e(f"v_and_b32 v{d+2}, v{d+2}, v{d+3}"); e(f"v_and_b32 v{d}, v{d}, v{d+2}")
    e(f"v_cmp_ne_u32 vcc, 1, v{d}")
    if lim is not None:
        e(f"s_bfm_b64 s[100:101], s{lim}, 0")
        e("s_and_b64 vcc, vcc, s[100:101]")
    elif nlanes < 64:
        e(f"s_bfm_b64 s[100:101], {nlanes}, 0")
        e("s_and_b64 vcc, vcc, s[100:101]")
    else:
        e("s_nop 0"); e("s_and_b64 vcc, vcc, exec")
    e(f"s_cbranch_scc0 {dn}")
    e("s_sleep 2")
    e(f"s_sub_u32 s{S_SPIN}, s{S_SPIN}, 1")
    e(f"s_cmp_lg_u32 s{S_SPIN}, 0")
    e(f"s_cbranch_scc1 {lp}")
    e(dn + ":")


def poll_init(e, vt):
    poll(e, R_DBG, "0", 1, 1, vt, stride=0)


def set_flag(e, soff, vt):
    e(f"v_mov_b32 v{vt}, 1")
    e("s_mov_b64 exec, 1")
    e(f"buffer_store_dword v{vt}, off, {sr(R_WS)}, {soff} sc1")
    e("s_mov_b64 exec, -1")


def kc_dma(e, dst, n, srow, step_rows=8, perm=False):
    t0, t1, t2 = VT[0], VT[1], VT[2]
    e(f"v_lshrrev_b32 v{t0}, 3, v{V_LANE}")
    e(f"v_and_b32 v{t1}, 7, v{V_LANE}")
    e(f"v_lshrrev_b32 v{t2}, 1, v{t0}")
    e(f"v_xor_b32 v{t1}, v{t1}, v{t2}")
    if perm:
        e(f"v_lshrrev_b32 v{t2}, 2, v{t0}")
        e(f"v_and_b32 v{t0}, 3, v{t0}")
        e(f"v_lshl_add_u32 v{t0}, v{t2}, 5, v{t0}")
    e(f"v_add_u32 v{t0}, s{srow}, v{t0}")
    e(f"v_lshlrev_b32 v{t0}, 11, v{t0}")
    e(f"v_lshl_add_u32 v{dst}, v{t1}, 4, v{t0}")
    e(f"v_xor_b32 v{t0}, 64, v{dst}")
    for i in range(1, n):
        e(f"v_add_u32 v{dst+i}, {i*(step_rows*2048-1024)}, v{t0 if i & 1 else dst}")


def kc_read(e, dst, sbase):
    t0, t1, t2 = VT[0], VT[1], VT[2]
    e(f"v_and_b32 v{t0}, 31, v{V_LANE}")
    e(f"v_lshrrev_b32 v{t1}, 5, v{V_LANE}")
    e(f"v_bfe_u32 v{t2}, v{V_LANE}, 1, 3")
    e(f"v_xor_b32 v{t1}, v{t1}, v{t2}")
    e(f"v_lshlrev_b32 v{t1}, 4, v{t1}")
    e(f"v_lshl_add_u32 v{t1}, v{t0}, 7, v{t1}")
    e(f"v_add_u32 v{dst}, s{sbase}, v{t1}")
    for s in range(1, 4):
        e(f"v_xor_b32 v{dst+s}, {32*s}, v{dst}")


def trw_dma(e, dst, scol2, slw):
    t0, t1, t2 = VT[0], VT[1], VT[2]
    e(f"v_lshrrev_b32 v{t0}, 4, v{V_LANE}")
    e(f"v_and_b32 v{t1}, 15, v{V_LANE}")
    e(f"v_lshlrev_b32 v{t2}, 2, v{t0}")
    e(f"v_xor_b32 v{t1}, v{t1}, v{t2}")
    e(f"s_lshl_b32 s{S_T0}, s{slw}, 4")
    e(f"v_add_u32 v{t0}, s{S_T0}, v{t0}")
    e(f"v_lshlrev_b32 v{t0}, 11, v{t0}")
    e(f"v_lshl_add_u32 v{t0}, v{t1}, 4, v{t0}")
    e(f"v_add_u32 v{dst}, s{scol2}, v{t0}")
    for i in range(1, 4):
        e(f"v_add_u32 v{dst+i}, {i*(4*2048-1024)}, v{dst}")


def trw_read(e, dst, base, snt0, dnt, khmul):
    t0, t1, t2, t3 = VT[0], VT[1], VT[2], VT[3]
    e(f"v_bfe_u32 v{t0}, v{V_LANE}, 2, 2")
    e(f"v_lshrrev_b32 v{t1}, 5, v{V_LANE}")
    e(f"v_mul_u32_u24 v{t1}, {khmul}, v{t1}")
    e(f"v_add_u32 v{t1}, v{t1}, v{t0}")
    e(f"v_lshlrev_b32 v{t1}, 8, v{t1}")
    e(f"v_bfe_u32 v{t2}, v{V_LANE}, 4, 1")
    e(f"v_lshl_add_u32 v{t1}, v{t2}, 5, v{t1}")
    e(f"v_and_b32 v{t2}, 3, v{V_LANE}")
    e(f"v_lshl_add_u32 v{t1}, v{t2}, 3, v{t1}")
    e(f"v_xor_b32 v{t0}, s{snt0}, v{t0}")
    e(f"v_lshl_add_u32 v{t1}, v{t0}, 6, v{t1}")
    e(f"v_add_u32 v{dst}, {base}, v{t1}")
    e(f"v_xor_b32 v{dst+1}, {64*dnt}, v{dst}")


def lin_dma(e, dst, slw):
    e(f"s_lshl_b32 s{S_T0}, s{slw}, 12")
    e(f"v_lshl_add_u32 v{dst}, v{V_LANE}, 4, s{S_T0}")


def gemm_compute(e, nst, rdA, rdB, flips, hook=None):
    def reads(s, off):
        f = V_FR + 16 * s
        return rdA(f, 0, s, off) + rdB(f + 8, 0, s, off) + rdB(f + 12, 1, s, off) + rdA(f + 4, 1, s, off)
    nrd = len(reads(0, 0))
    def mf(s):
        f = V_FR + 16 * s
        return [mfma(V_ACC + 16 * (2 * i + j), f + 4 * i, f + 8 + 4 * j) for i, j in ((0, 0), (0, 1), (1, 1), (1, 0))]
    e("s_barrier")
    e(reads(0, 0)); e(reads(1, 0))
    e(f"s_mov_b32 s{S_CNT}, {nst//2}")
    lp = e.lab("gloop")
    e(".p2align 3")
    e(lp + ":")
    for g in range(8):
        s = g & 3; gn = g + 2; sn = gn & 3
        off = ((gn >> 2) & 1) * 32768
        m = mf(s)
        oth = []
        if sn == 0: oth.append("s_barrier")
        pre = [f"v_xor_b32 v{r}, 0x10000, v{r}" for r in flips.get(g, [])]
        oth += pre + reads(sn, off)
        e(f"s_waitcnt lgkmcnt({nrd})")
        if g == 7:
            body = inter(m[:3], oth + [f"s_sub_u32 s{S_CNT}, s{S_CNT}, 1", f"s_cmp_lg_u32 s{S_CNT}, 0"]) + [m[3]]
            e(body)
        else:
            e(inter(m, oth))
        if g == 3 and hook: hook(e)
    e(f"s_cbranch_scc1 {lp}")


def gemm_loader(e, segs, extra=None):
    total = sum(s[0] for s in segs)
    def adv():
        e(f"s_add_u32 s{S_SLOT}, s{S_SLOT}, 0x8000"); e(f"s_and_b32 s{S_SLOT}, s{S_SLOT}, 0x1ffff")
    e(f"s_mov_b32 s{S_SLOT}, 0")
    first = True
    for (cnt, setup, issue) in segs:
        setup(e)
        if first:
            issue(e); adv(); issue(e); adv(); cnt -= 2; first = False
        if cnt > 1:
            lp = e.lab("lloop")
            e(f"s_mov_b32 s{S_CNT}, {cnt}")
            e(lp + ":")
        e("s_waitcnt vmcnt(8)"); e("s_barrier")
        issue(e); adv()
        if cnt > 1:
            e(f"s_sub_u32 s{S_CNT}, s{S_CNT}, 1"); e(f"s_cmp_lg_u32 s{S_CNT}, 0"); e(f"s_cbranch_scc1 {lp}")
    e("s_waitcnt vmcnt(8)"); e("s_barrier")
    e("s_waitcnt vmcnt(0)"); e("s_barrier")


def dma4(e, vregs, srd, soff, m0s, flags=""):
    e(f"s_add_u32 m0, s{S_SLOT}, s{m0s}")
    e("s_nop 0")
    for i in range(4):
        e(f"buffer_load_dwordx4 v{vregs[i]}, {sr(srd)}, s{soff} offen offset:{1024*i} {flags} lds".replace("  ", " "))


def zero_acc(e):
    for i in range(64): e(f"v_mov_b32 v{V_ACC+i}, 0")


def store_tile(e, col_base_s):
    t0, t1 = VT[0], VT[1]
    e(f"s_and_b32 s{S_T0}, s{S_W8}, 1")
    e(f"s_lshl_b32 s{S_T0}, s{S_T0}, 19")
    e(f"s_lshr_b32 s{S_T1}, s{S_W8}, 1")
    e(f"s_lshl_b32 s{S_T1}, s{S_T1}, 8")
    e(f"s_add_u32 s{S_T0}, s{S_T0}, s{S_T1}")
    e(f"s_add_u32 s{S_T0}, s{S_T0}, s{col_base_s}")
    e(f"v_lshrrev_b32 v{t0}, 5, v{V_LANE}")
    e(f"v_and_b32 v{t1}, 31, v{V_LANE}")
    e(f"v_lshlrev_b32 v{t0}, 15, v{t0}")
    e(f"v_lshl_add_u32 v{t0}, v{t1}, 2, v{t0}")
    e("s_nop 7")
    for i in range(2):
        for r in range(16):
            row = 32 * i + 8 * (r >> 2) + (r & 3)
            e(f"s_add_u32 s{S_T1}, s{S_T0}, {row*8192}")
            for j in range(2):
                e(f"buffer_store_dword v{V_ACC+16*(2*i+j)+r}, v{t0}, {sr(R_OUT)}, s{S_T1} offen offset:{128*j}")


def kv_dma(e, stage_imm=None):
    L = [f"s_mov_b32 m0, s{S_M0A}"]
    for i in range(4):
        L.append(f"buffer_load_dwordx4 v{V_KVOFF}, {sr(R_KV)}, s{S_K0} offen offset:{1024*i} sc1 lds")
    return L


def att_setup(e):
    e.srd(R_KV, P_WS, WS_KV + 0x40000)
    e(f"s_lshl_b32 s{S_T0}, s{S_W8}, 12")
    e(f"v_lshl_add_u32 v{V_KVOFF}, v{V_LANE}, 4, s{S_T0}")
    e(f"v_lshlrev_b32 v{V_CUR}, 4, v{V_LANE}")
    e(f"v_add_u32 v{V_NXT}, {RING[1]}, v{V_CUR}")
    e(f"v_add_u32 v{V_CUR}, {RING[0]}, v{V_CUR}")
    e(f"v_mov_b32 v{V_IDX}, 0xdddddddd")
    e(f"v_bfe_u32 v{VT[0]}, v{V_LANE}, 2, 1")
    e(f"v_mul_u32_u24 v{V_ONES+2}, 0x3f80, v{VT[0]}")
    e(f"v_lshl_or_b32 v{V_ONES+2}, v{V_ONES+2}, 16, v{V_ONES+2}")
    e(f"v_xor_b32 v{V_ONES}, 0x3f803f80, v{V_ONES+2}")
    e(f"v_mov_b32 v{V_ONES+3}, v{V_ONES+2}")
    e(f"v_mov_b32 v{V_ONES+1}, v{V_ONES}")


def kv_issue(e, st):
    e(f"s_lshl_b32 s{S_M0A}, s{S_W8}, 12")
    e(f"s_add_u32 s{S_M0A}, s{S_M0A}, {RING[st % 3]}")
    e(f"s_mov_b32 s{S_K0}, {WS_KV + st*0x8000}")
    L = kv_dma(e); e(L[0]); e("s_nop 0"); e(L[1:])


def pv(v, s):  return f"v_smfmac_f32_32x32x32_bf16 {vr(V_O,16)}, {vr(v,4)}, {vr(s,8)}, v{V_IDX}"
def rs(s):     return f"v_smfmac_f32_16x16x64_bf16 {vr(V_L,4)}, {vr(V_ONES,4)}, {vr(s,8)}, v{V_IDX}"


def attention(e, hooks_bar, hooks_end):
    def rd(reg, t, f):
        a, t = (V_CUR, t) if t < 8 else (V_NXT, t - 8)
        return f"ds_read_b128 {vr(reg,4)}, v{a} offset:{t*4096 + f*1024}"
    e(rd(V_K0, 0, 0)); e(rd(V_K1, 0, 1)); e(rd(V_V0, 0, 2))
    for i in range(16): e(f"v_mov_b32 v{V_O+i}, 0")
    for i in range(4): e(f"v_mov_b32 v{V_L+i}, 0")
    for i in range(4): e(f"v_mov_b32 v{V_V1+i}, 0")
    for i in range(8): e(f"v_mov_b32 v{V_S[1]+8+i}, 0")
    e("s_waitcnt lgkmcnt(1)")
    e(mfma(V_S[0], V_K0, V_Q, "0")); e(rd(V_K0, 1, 0))
    e(mfma(V_S[0], V_K1, V_Q + 4)); e(rd(V_K1, 1, 1))
    e(f"s_mov_b32 s{S_CNT}, 0")
    e(f"s_mov_b32 s{S_K0}, {WS_KV + 2*0x8000}")
    e(f"s_lshl_b32 s{S_M0B}, s{S_W8}, 12")
    e(f"s_mov_b32 s{S_SLOT}, {RING[2]}")
    e(f"s_add_u32 s{S_M0A}, s{S_M0B}, s{S_SLOT}")
    e("s_nop 7")
    lp = e.lab("att")
    outl = []
    e(".p2align 3")
    e(lp + ":")
    for t in range(8):
        S, Sn = V_S[t & 1], V_S[1 - (t & 1)]
        ex = lambda a, b: [f"v_exp_f32 v{S+i}, v{S+i}" for i in range(a, b)]
        dm = kv_dma(e)
        x = {0: [], 1: [], 2: [], 3: []}
        if t == 6:
            x[1] = ["s_waitcnt vmcnt(0)", "s_barrier"]
            if hooks_bar:
                hl, hr = e.lab("hb"), e.lab("hbr")
                mask = sum(1 << s for s in hooks_bar)
                x[1] += [f"s_bitcmp1_b32 {mask}, s{S_CNT}", f"s_cbranch_scc1 {hl}", hr + ":"]
                outl.append((hl, hr, hooks_bar))
            x[2] = [dm[0]]; x[3] = [dm[1]]
        if t == 7:
            x[0] = [dm[2]]; x[1] = [dm[3]]; x[2] = [dm[4]]
        e(ex(0, 2)); e(pv(V_V1, Sn + 8)); e(rd(V_V1, t, 3)); e(x[0])
        e(ex(2, 5)); e(rs(Sn + 8)); e("s_waitcnt lgkmcnt(1)"); e(x[1])
        e(ex(5, 6)); e(mfma(Sn, V_K0, V_Q, "0")); e(rd(V_K0, t + 2, 0))
        e(ex(6, 9)); e(mfma(Sn, V_K1, V_Q + 4)); e(rd(V_K1, t + 2, 1))
        e(ex(9, 12)); e(pv(V_V0, S)); e(rd(V_V0, t + 1, 2)); e(x[2])
        e(ex(12, 15)); e(rs(S)); e("s_waitcnt lgkmcnt(3)"); e(x[3])
        e(ex(15, 16))
    e(f"v_mov_b32 v{V_CUR}, v{V_NXT}")
    e(f"v_lshl_add_u32 v{V_NXT}, v{V_LANE}, 4, s{S_SLOT}")
    e(f"s_sub_u32 s{S_SLOT}, s{S_SLOT}, 0x8000")
    e(f"s_cmp_lt_u32 s{S_SLOT}, {RING[2]}")
    e(f"s_cselect_b32 s{S_SLOT}, {RING[0]}, s{S_SLOT}")
    e(f"s_add_u32 s{S_M0A}, s{S_M0B}, s{S_SLOT}")
    e(f"s_add_u32 s{S_K0}, s{S_K0}, 0x8000")
    if hooks_end:
        hl, hr = e.lab("he"), e.lab("her")
        mask = sum(1 << s for s in hooks_end)
        e(f"s_bitcmp1_b32 {mask}, s{S_CNT}"); e(f"s_cbranch_scc1 {hl}"); e(hr + ":")
        outl.append((hl, hr, hooks_end))
    e(f"s_add_u32 s{S_CNT}, s{S_CNT}, 1")
    e(f"s_cmp_lt_u32 s{S_CNT}, 8")
    e(f"s_cbranch_scc1 {lp}")
    e(pv(V_V1, V_S[1] + 8)); e(rs(V_S[1] + 8))
    done = e.lab("attd")
    e(f"s_branch {done}")
    for hl, hr, hooks in outl:
        e(hl + ":")
        keys = sorted(hooks)
        for k in keys:
            nx = e.lab("hn")
            if k != keys[-1]:
                e(f"s_cmp_lg_u32 s{S_CNT}, {k}"); e(f"s_cbranch_scc1 {nx}")
            hooks[k](e)
            e(f"s_branch {hr}")
            if k != keys[-1]: e(nx + ":")
    e(done + ":")


def att_slow(e):
    t0, t1 = VT[0], VT[1]
    S, M = V_S[0], V_S[1]
    e(f"v_lshlrev_b32 v{t0}, 4, v{V_LANE}")
    e(f"v_mov_b32 v{t1}, 0xff800000")
    e(f"s_mov_b32 s{S_T0}, {WS_KV}")
    l1 = e.lab("slow1")
    e(l1 + ":")
    e(f"buffer_load_dwordx4 {vr(V_K0,4)}, v{t0}, {sr(R_KV)}, s{S_T0} offen sc1")
    e(f"buffer_load_dwordx4 {vr(V_K1,4)}, v{t0}, {sr(R_KV)}, s{S_T0} offen offset:1024 sc1")
    e("s_waitcnt vmcnt(0)")
    e(mfma(S, V_K0, V_Q, "0")); e(mfma(S, V_K1, V_Q + 4))
    e("s_nop 15")
    for i in range(0, 16, 2): e(f"v_max3_f32 v{t1}, v{t1}, v{S+i}, v{S+i+1}")
    e(f"s_add_u32 s{S_T0}, s{S_T0}, 4096")
    e(f"s_cmp_lt_u32 s{S_T0}, {WS_KV + 0x40000}")
    e(f"s_cbranch_scc1 {l1}")
    e(f"v_mov_b32 v{M}, v{t1}")
    e("s_nop 1")
    e(f"v_permlane32_swap_b32 v{M}, v{t1}")
    e("s_nop 1")
    e(f"v_max_f32 v{t1}, v{t1}, v{M}")
    for i in range(16): e(f"v_sub_f32 v{M+i}, 0, v{t1}")
    for i in range(16): e(f"v_mov_b32 v{V_O+i}, 0")
    for i in range(4): e(f"v_mov_b32 v{V_L+i}, 0")
    e(f"s_mov_b32 s{S_T0}, {WS_KV}")
    l2 = e.lab("slow2")
    e(l2 + ":")
    for f, r in enumerate((V_K0, V_K1, V_V0, V_V1)):
        e(f"buffer_load_dwordx4 {vr(r,4)}, v{t0}, {sr(R_KV)}, s{S_T0} offen offset:{1024*f} sc1")
    e("s_waitcnt vmcnt(0)")
    e(mfma(S, V_K0, V_Q, vr(M, 16))); e(mfma(S, V_K1, V_Q + 4))
    e("s_nop 15")
    for i in range(16): e(f"v_exp_f32 v{S+i}, v{S+i}")
    e("s_nop 2")
    e(pv(V_V0, S)); e(pv(V_V1, S + 8)); e(rs(S)); e(rs(S + 8))
    e(f"s_add_u32 s{S_T0}, s{S_T0}, 4096")
    e(f"s_cmp_lt_u32 s{S_T0}, {WS_KV + 0x40000}")
    e(f"s_cbranch_scc1 {l2}")
    e("s_nop 15")


def att_finish(e, grp):
    t0, t1, t2 = VT[0], VT[1], VT[2]
    e("s_waitcnt lgkmcnt(0)")
    e(f"s_lshl_b32 s{S_T3}, s{S_A}, 18")
    e(f"s_lshl_b32 s{S_T1}, s{S_B}, 15")
    e(f"s_add_u32 s{S_T3}, s{S_T3}, s{S_T1}")
    e(f"s_and_b32 s{S_T1}, s{S_W8}, 2")
    e(f"s_lshr_b32 s{S_T2}, s{S_W8}, 2")
    e(f"s_add_u32 s{S_T1}, s{S_T1}, s{S_T2}")
    e(f"s_lshl_b32 s{S_T1}, s{S_T1}, 12")
    e(f"s_add_u32 s{S_T3}, s{S_T3}, s{S_T1}")
    e(f"s_and_b32 s{S_T1}, s{S_W8}, 1")
    e(f"s_lshl_b32 s{S_T1}, s{S_T1}, 11")
    e(f"s_add_u32 s{S_T3}, s{S_T3}, s{S_T1}")
    e(f"s_add_u32 s{S_T3}, s{S_T3}, {WS_O + (0x4000 if grp == 1 else 0)}")
    e("s_nop 1")
    e(f"v_mov_b32 v{t0}, v{V_L}")
    for i in range(16): e(f"v_fmac_f32 v{t0}, 0, v{V_O+i}")
    e(f"v_cmp_ngt_f32 vcc, 0x5f800000, v{t0}")
    e(f"v_mov_b32 v{t1}, 0x2f800000")
    e(f"v_cmp_nge_f32 s[100:101], v{t0}, v{t1}")
    e("s_nop 1")
    e("s_or_b64 vcc, vcc, s[100:101]")
    ok = e.lab("attok")
    if not e.cfg.force_slow: e(f"s_cbranch_scc0 {ok}")
    att_slow(e)
    e(ok + ":")
    e(f"v_rcp_f32 v{t0}, v{V_L}")
    e(f"v_lshlrev_b32 v{t1}, 4, v{V_LANE}")
    for i in range(16): e(f"v_mul_f32 v{V_O+i}, v{V_O+i}, v{t0}")
    for i in range(8): e(f"v_cvt_pk_bf16_f32 v{V_S[0]+i}, v{V_O+2*i}, v{V_O+2*i+1}")
    e(f"buffer_store_dwordx4 {vr(V_S[0],4)}, v{t1}, {sr(R_WS)}, s{S_T3} offen sc1")
    e(f"buffer_store_dwordx4 {vr(V_S[0]+4,4)}, v{t1}, {sr(R_WS)}, s{S_T3} offen offset:1024 sc1")


def o_flag(e, grp):
    e("s_waitcnt vmcnt(0)"); e("s_barrier")
    sk = e.lab("nof")
    e(f"s_cmp_lg_u32 s{S_W8}, 0"); e(f"s_cbranch_scc1 {sk}")
    e(f"s_lshl_b32 s{S_T0}, s{S_A}, 6")
    e(f"s_lshl2_add_u32 s{S_T0}, s{S_B}, s{S_T0}")
    e(f"s_add_u32 s{S_T0}, s{S_T0}, {WS_FO + (32 if grp == 1 else 0)}")
    set_flag(e, f"s{S_T0}", VT[0])
    e(sk + ":")


def group2(e):
    AD = V_AD
    e.srd(R_A, P_XB, 0x400000)
    e(f"s_bitcmp1_b32 s{S_B}, 0")
    e(f"s_cselect_b64 s[{R_B}:{R_B+1}], s[{P_WV}:{P_WV+1}], s[{P_WK}:{P_WK+1}]")
    e(f"s_mov_b32 s{R_B+2}, 0x10000"); e(f"s_mov_b32 s{R_B+3}, 0x20000")
    e(f"s_lshr_b32 s{S_T1}, s{S_B}, 1")
    e(f"s_lshl2_add_u32 s{S_TC}, s{S_A}, s{S_T1}")
    e(f"s_lshl_b32 s{S_T1}, s{S_TC}, 5")
    kc_dma(e, AD, 4, S_T1)
    e(f"v_lshlrev_b32 v{AD+4}, 4, v{V_LANE}")
    e(f"s_lshl_b32 s{S_SLOT}, s{S_W8}, 14")
    e(f"s_lshl_b32 s{S_K0}, s{S_W8}, 8")
    e(f"s_lshl_b32 s{S_K1}, s{S_W8}, 13")
    for sub in range(2):
        e(f"s_mov_b32 s{S_M0A}, {4096*sub}")
        dma4(e, [AD, AD+1, AD+2, AD+3], R_A, S_K0, S_M0A)
        e(f"s_mov_b32 s{S_M0A}, {8192 + 4096*sub}")
        dma4(e, [AD+4]*4, R_B, S_K1, S_M0A)
        if sub == 0:
            e(f"s_add_u32 s{S_K0}, s{S_K0}, 128"); e(f"s_add_u32 s{S_K1}, s{S_K1}, 4096")
    kc_read(e, AD+8, S_SLOT)
    t0, t1, t2 = VT[0], VT[1], VT[2]
    e(f"v_bfe_u32 v{t0}, v{V_LANE}, 2, 2")
    e(f"v_lshrrev_b32 v{t1}, 5, v{V_LANE}")
    e(f"v_lshl_add_u32 v{t0}, v{t1}, 3, v{t0}")
    e(f"v_bfe_u32 v{t1}, v{V_LANE}, 4, 1")
    e(f"v_lshlrev_b32 v{t1}, 5, v{t1}")
    e(f"v_lshl_add_u32 v{t0}, v{t0}, 6, v{t1}")
    e(f"v_and_b32 v{t1}, 3, v{V_LANE}")
    e(f"v_lshl_add_u32 v{t0}, v{t1}, 3, v{t0}")
    e(f"v_add_u32 v{AD+12}, s{S_SLOT}, v{t0}")
    e(f"s_lshl_b32 s{S_T0}, s{S_W8}, 12")
    e(f"s_add_u32 s{S_T0}, s{S_T0}, 0x20000")
    e(f"v_lshl_add_u32 v{AD+13}, v{V_LANE}, 4, s{S_T0}")
    e("s_waitcnt vmcnt(0)")
    e.stamp(1)
    XF, WF = V_ACC, V_ACC + 32
    for k in range(8):
        e(f"ds_read_b128 {vr(XF+4*k,4)}, v{AD+8+(k&3)} offset:{4096*(k>>2)}")
        e(f"ds_read_b64_tr_b16 {vr(WF+4*k,2)}, v{AD+12} offset:{8192+1024*k}")
        e(f"ds_read_b64_tr_b16 {vr(WF+4*k+2,2)}, v{AD+12} offset:{8192+1024*k+256}")
        if k == 3: e("s_waitcnt lgkmcnt(0)")
    e("s_waitcnt lgkmcnt(0)")
    lv, lj = e.lab("kvv"), e.lab("kvj")
    e(f"s_bitcmp1_b32 s{S_B}, 0"); e(f"s_cbranch_scc1 {lv}")
    for k in range(8): e(mfma(V_FR, WF+4*k, XF+4*k, "0" if k == 0 else None))
    e(f"s_branch {lj}")
    e(lv + ":")
    for k in range(8): e(mfma(V_FR, XF+4*k, WF+4*k, "0" if k == 0 else None))
    e(lj + ":")
    e("s_nop 15")
    for q in range(4): e(f"ds_write_b128 v{AD+13}, {vr(V_FR+4*q,4)} offset:{1024*q}")
    e("s_waitcnt lgkmcnt(0)"); e("s_barrier")
    e.stamp(2)
    lload, lqend = e.lab("qload"), e.lab("qend")
    e(f"s_cmp_ge_u32 s{S_W8}, 4"); e(f"s_cbranch_scc1 {lload}")
    nored = e.lab("nored")
    e(f"s_cmp_ge_u32 s{S_W8}, 2"); e(f"s_cbranch_scc1 {nored}")
    e(f"s_lshl_b32 s{S_T0}, s{S_W8}, 11")
    e(f"s_add_u32 s{S_T0}, s{S_T0}, 0x20000")
    e(f"v_lshl_add_u32 v{t0}, v{V_LANE}, 4, s{S_T0}")
    for w in range(8):
        e(f"ds_read_b128 {vr(V_ACC+8*w,4)}, v{t0} offset:{4096*w}")
        e(f"ds_read_b128 {vr(V_ACC+8*w+4,4)}, v{t0} offset:{4096*w+1024}")
        if w == 5: e("s_waitcnt lgkmcnt(4)")
    e(f"v_lshrrev_b32 v{t1}, 1, v{V_LANE}")
    e(f"v_xor_b32 v{t1}, v{t1}, v{V_LANE}")
    e(f"v_and_b32 v{t1}, 4, v{t1}")
    e(f"v_mul_u32_u24 v{t1}, 3, v{t1}")
    e(f"s_and_b32 s{S_T1}, s{S_B}, 1")
    e(f"s_sub_u32 s{S_T2}, s{S_T1}, 1")
    e(f"v_and_b32 v{t1}, s{S_T2}, v{t1}")
    e(f"v_xor_b32 v{t1}, v{t1}, v{V_LANE}")
    e(f"v_lshlrev_b32 v{t1}, 4, v{t1}")
    e(f"s_lshl1_add_u32 s{S_T1}, s{S_T1}, s{S_W8}")
    e(f"s_lshl2_add_u32 s{S_T1}, s{S_TC}, s{S_T1}")
    e(f"s_lshl_b32 s{S_T2}, s{S_T1}, 10")
    e(f"s_add_u32 s{S_T2}, s{S_T2}, {WS_KV}")
    e(f"s_lshl_b32 s{S_CB}, s{S_T1}, 2")
    e("s_waitcnt lgkmcnt(0)")
    for step in (4, 2, 1):
        for w in range(step):
            for i in range(8): e(f"v_add_f32 v{V_ACC+8*w+i}, v{V_ACC+8*w+i}, v{V_ACC+8*(w+step)+i}")
    for i in range(4): e(f"v_cvt_pk_bf16_f32 v{V_FR+i}, v{V_ACC+2*i}, v{V_ACC+2*i+1}")
    e(f"buffer_store_dwordx4 {vr(V_FR,4)}, v{t1}, {sr(R_WS)}, s{S_T2} offen sc1")
    poll_init(e, VT[2])
    set_flag(e, f"s{S_CB}", VT[0])
    e(nored + ":")
    e(f"s_and_b32 s{S_T1}, s{S_W8}, 1")
    trw_read(e, AD, 0, S_T1, 2, 8)
    e(f"s_lshr_b32 s{S_T1}, s{S_W8}, 1")
    e(f"s_lshl_b32 s{S_T1}, s{S_T1}, 13")
    e(f"s_add_u32 s{S_T1}, s{S_T1}, 16384")
    kc_read(e, AD+2, S_T1)
    zero_acc(e)
    rdA = lambda f, t, s, off: [f"ds_read_b64_tr_b16 {vr(f+2*q,2)}, v{AD+t} offset:{off+4096*s+1024*q}" for q in range(2)]
    rdB = lambda f, t, s, off: [f"ds_read_b128 {vr(f,4)}, v{AD+2+s} offset:{off+4096*t}"]
    gemm_compute(e, 16, rdA, rdB, {6: [AD, AD+1, AD+2, AD+3, AD+4, AD+5]})
    e.stamp(3)
    e(f"s_mov_b32 s{S_T0}, {float_bits(math.log2(math.e) / math.sqrt(32.0)):#x}")
    e(f"s_lshl_b32 s{S_T1}, s{S_A}, 3")
    e(f"s_add_u32 s{S_T1}, s{S_T1}, s{S_B}")
    e(f"s_lshl_b32 s{S_T1}, s{S_T1}, 3")
    e(f"s_add_u32 s{S_T1}, s{S_T1}, s{S_W8}")
    e(f"s_lshl_b32 s{S_T1}, s{S_T1}, 11")
    e(f"s_add_u32 s{S_T1}, s{S_T1}, {WS_Q}")
    e(f"s_add_u32 s{S_T2}, s{S_T1}, {4*2048}")
    e(f"v_lshlrev_b32 v{t1}, 4, v{V_LANE}")
    e(f"s_lshl_b32 s{S_T3}, s{S_W8}, 11")
    e(f"v_add_u32 v{t2}, s{S_T3}, v{t1}")
    e("s_waitcnt lgkmcnt(0)")
    e("s_nop 3")
    dsts = {0: V_Q, 1: V_FR, 2: V_FR+8, 3: V_FR+16}
    for tl in (0, 1, 3, 2):
        for i in range(16): e(f"v_mul_f32 v{V_ACC+16*tl+i}, s{S_T0}, v{V_ACC+16*tl+i}")
        for i in range(8): e(f"v_cvt_pk_bf16_f32 v{dsts[tl]+i}, v{V_ACC+16*tl+2*i}, v{V_ACC+16*tl+2*i+1}")
        if tl == 1:
            for q in range(2): e(f"ds_write_b128 v{t2}, {vr(V_FR+4*q,4)} offset:{0x8000+1024*q}")
        if tl >= 2:
            for q in range(2): e(f"buffer_store_dwordx4 {vr(dsts[tl]+4*q,4)}, v{t1}, {sr(R_WS)}, s{S_T1 if tl == 2 else S_T2} offen offset:{1024*q} sc1")
    att_setup(e)
    e("s_waitcnt lgkmcnt(0)"); e("s_barrier")
    e(f"s_branch {lqend}")
    e(lload + ":")
    e.srd(R_B, P_WQ, 0x200000)
    e(f"s_lshl_b32 s{S_T1}, s{S_B}, 8")
    trw_dma(e, AD, S_T1, S_LW)
    e(f"s_lshl_b32 s{S_T1}, s{S_A}, 7")
    e(f"s_lshl_b32 s{S_T2}, s{S_LW}, 5")
    e(f"s_add_u32 s{S_T1}, s{S_T1}, s{S_T2}")
    kc_dma(e, AD+4, 4, S_T1)
    e(f"s_lshl_b32 s{S_M0A}, s{S_LW}, 12")
    e(f"s_add_u32 s{S_M0B}, s{S_M0A}, 16384")
    def su(e): e(f"s_mov_b32 s{S_K0}, 0"); e(f"s_mov_b32 s{S_K1}, 0")
    def iss(e):
        dma4(e, [AD, AD+1, AD+2, AD+3], R_B, S_K0, S_M0A)
        dma4(e, [AD+4, AD+5, AD+6, AD+7], R_A, S_K1, S_M0B)
        e(f"s_add_u32 s{S_K0}, s{S_K0}, 0x20000"); e(f"s_add_u32 s{S_K1}, s{S_K1}, 128")
    gemm_loader(e, [(16, su, iss)])
    att_setup(e)
    poll_init(e, VT[0])
    poll(e, R_WS, "0", 64, 4, VT[0])
    kv_issue(e, 0)
    e(f"s_sub_u32 s{S_M0A}, s{S_M0A}, 0x4000")
    e(f"s_sub_u32 s{S_K0}, s{S_K0}, 0x4000")
    L = kv_dma(e); e(L[0]); e("s_nop 0"); e(L[1:])
    e("s_barrier")
    e(f"s_lshl_b32 s{S_T3}, s{S_LW}, 11")
    e(f"v_lshl_add_u32 v{t2}, v{V_LANE}, 4, s{S_T3}")
    e("s_waitcnt vmcnt(0)"); e("s_barrier")
    for q in range(2): e(f"ds_read_b128 {vr(V_Q+4*q,4)}, v{t2} offset:{0x8000+1024*q}")
    e(lqend + ":")
    kv_issue(e, 1)
    e.stamp(4)
    def qflag(e):
        sk = e.lab("nq")
        e(f"s_cmp_lg_u32 s{S_W8}, 0"); e(f"s_cbranch_scc1 {sk}")
        e(f"s_lshl_b32 s{S_T0}, s{S_A}, 5")
        e(f"s_lshl2_add_u32 s{S_T0}, s{S_B}, s{S_T0}")
        e(f"s_add_u32 s{S_T0}, s{S_T0}, {WS_FQ}")
        set_flag(e, f"s{S_T0}", VT[0])
        e(sk + ":")
    attention(e, {0: qflag}, {})
    e.stamp(5)
    att_finish(e, 2)
    o_flag(e, 2)
    e.stamp(6)
    lload, lend = e.lab("yload"), e.lab("yend")
    e(f"s_cmp_ge_u32 s{S_W8}, 4"); e(f"s_cbranch_scc1 {lload}")
    DG = 88
    e.srd(R_C, P_DSK, 0x800)
    e(f"s_lshr_b32 s{S_T1}, s{S_W8}, 1")
    e(f"s_lshl_b32 s{S_T2}, s{S_T1}, 7")
    e(f"s_lshl_b32 s{S_T3}, s{S_B}, 8")
    e(f"s_add_u32 s{S_T2}, s{S_T2}, s{S_T3}")
    e(f"v_and_b32 v{VT[4]}, 31, v{V_LANE}")
    e(f"v_lshlrev_b32 v{VT[3]}, 1, v{VT[4]}")
    e(f"buffer_load_ushort v{VT[5]}, v{VT[3]}, {sr(R_C)}, s{S_T2} offen")
    e(f"buffer_load_ushort v{VT[6]}, v{VT[3]}, {sr(R_C)}, s{S_T2} offen offset:64")
    e(f"s_lshl_b32 s{S_T1}, s{S_T1}, 13")
    e(f"s_add_u32 s{S_T1}, s{S_T1}, 16384")
    kc_read(e, AD+2, S_T1)
    e(f"v_bfe_u32 v{t0}, v{V_LANE}, 4, 1")
    e(f"v_bfe_u32 v{t1}, v{V_LANE}, 1, 1")
    e(f"v_lshl_add_u32 v{t0}, v{t0}, 1, v{t1}")
    e(f"v_lshrrev_b32 v{t1}, 5, v{V_LANE}")
    e(f"v_lshlrev_b32 v{t1}, 1, v{t1}")
    e(f"v_xor_b32 v{t1}, v{t1}, v{t0}")
    e(f"v_bfe_u32 v{t2}, v{V_LANE}, 2, 2")
    e(f"v_lshl_add_u32 v{t1}, v{t1}, 2, v{t2}")
    e(f"v_lshlrev_b32 v{t1}, 4, v{t1}")
    e(f"v_lshl_add_u32 v{t1}, v{t0}, 10, v{t1}")
    e(f"v_and_b32 v{t2}, 1, v{V_LANE}")
    e(f"v_lshl_add_u32 v{t1}, v{t2}, 3, v{t1}")
    e(f"s_and_b32 s{S_T1}, s{S_W8}, 1")
    e(f"s_lshl_b32 s{S_T2}, s{S_T1}, 12")
    e(f"v_add_u32 v{AD}, s{S_T2}, v{t1}")
    e(f"v_xor_b32 v{AD+1}, 64, v{AD}")
    e(f"s_lshl_b32 s{S_T1}, s{S_T1}, 13")
    e(f"s_lshr_b32 s{S_T2}, s{S_W8}, 1")
    e(f"s_lshl_b32 s{S_T2}, s{S_T2}, 14")
    e(f"s_add_u32 s{S_T1}, s{S_T1}, s{S_T2}")
    kc_read(e, AD+6, S_T1)
    zero_acc(e)
    e(f"v_lshrrev_b32 v{t0}, 5, v{V_LANE}")
    e(f"v_lshlrev_b32 v{t0}, 2, v{t0}")
    e(f"v_lshrrev_b32 v{t1}, 1, v{VT[4]}")
    e(f"v_sub_u32 v{t1}, v{t1}, v{t0}")
    e(f"v_and_b32 v{t0}, 1, v{V_LANE}")
    e(f"v_lshlrev_b32 v{t0}, 4, v{t0}")
    e("s_waitcnt vmcnt(0)")
    e(f"v_lshlrev_b32 v{VT[5]}, v{t0}, v{VT[5]}")
    e(f"v_lshlrev_b32 v{VT[6]}, v{t0}, v{VT[6]}")
    for s2 in range(2):
        for r in range(4):
            e(f"v_cmp_eq_u32 vcc, {8*s2+r}, v{t1}")
            e("s_nop 1")
            e(f"v_cndmask_b32 v{DG+4*s2+r}, 0, v{VT[5]}, vcc")
            e(f"v_cndmask_b32 v{DG+8+4*s2+r}, 0, v{VT[6]}, vcc")
    rdA = lambda f, t, s, off: [f"ds_read_b64_tr_b16 {vr(f+2*q,2)}, v{AD+q} offset:{off+8192*(s>>1)+256*(s&1)+512*t}" for q in range(2)]
    gemm_compute(e, 32, rdA, rdB, {6: [AD, AD+1, AD+2, AD+3, AD+4, AD+5]})
    e("s_waitcnt lgkmcnt(0)")
    for i in range(2):
        for s in range(4): e(f"ds_read_b128 {vr(V_FR+16*i+4*s,4)}, v{AD+6+s} offset:{4096*i}")
    for i in range(2):
        e(f"s_waitcnt lgkmcnt({4*(1-i)})")
        for s in (0, 2, 1, 3): e(mfma(V_ACC+16*(2*i+(s>>1)), V_FR+16*i+4*s, DG+4*s))
    e.stamp(7)
    e(f"s_lshl_b32 s{S_T2}, s{S_A}, 20")
    e(f"s_lshl_b32 s{S_T3}, s{S_B}, 9")
    e(f"s_add_u32 s{S_T2}, s{S_T2}, s{S_T3}")
    store_tile(e, S_T2)
    e(f"s_branch {lend}")
    e(lload + ":")
    e.srd(R_A, P_XA, 0x400000)
    e.srd(R_B, P_CRE, 0x200000)
    e.srd(R_C, P_CIM, 0x200000)
    lin_dma(e, AD, S_LW)
    e(f"s_lshl_b32 s{S_T1}, s{S_B}, 7")
    e(f"s_lshl_b32 s{S_T2}, s{S_LW}, 5")
    e(f"s_add_u32 s{S_T1}, s{S_T1}, s{S_T2}")
    kc_dma(e, AD+4, 4, S_T1)
    e(f"s_lshl_b32 s{S_T1}, s{S_A}, 7")
    e(f"s_add_u32 s{S_T1}, s{S_T1}, s{S_T2}")
    kc_dma(e, AD+8, 4, S_T1)
    e(f"s_lshl_b32 s{S_M0A}, s{S_LW}, 12")
    e(f"s_add_u32 s{S_M0B}, s{S_M0A}, 16384")
    e(f"s_lshr_b32 s{S_T0}, s{S_A}, 1")
    e(f"s_lshl_b32 s{S_T0}, s{S_T0}, 6")
    e(f"s_add_u32 s{S_T0}, s{S_T0}, {WS_FH}")
    poll(e, R_WS, f"s{S_T0}", 16, 1, VT[0])
    e(f"s_lshl_b32 s{S_K0}, s{S_A}, 19")
    e(f"s_add_u32 s{S_K0}, s{S_K0}, {WS_H}")
    def su(e): e(f"s_mov_b32 s{S_K1}, 0")
    def mk(srd):
        def iss(e):
            dma4(e, [AD]*4, R_WS, S_K0, S_M0A, "sc1")
            dma4(e, [AD+4, AD+5, AD+6, AD+7], srd, S_K1, S_M0B)
            e(f"s_add_u32 s{S_K0}, s{S_K0}, 0x4000"); e(f"s_add_u32 s{S_K1}, s{S_K1}, 128")
        return iss
    def sux(e):
        e(f"s_lshl_b32 s{S_K0}, s{S_B}, 8"); e(f"s_add_u32 s{S_K1}, s{S_K0}, 128")
    def issx(e):
        dma4(e, [AD+8, AD+9, AD+10, AD+11], R_A, S_K0, S_M0A)
        dma4(e, [AD+8, AD+9, AD+10, AD+11], R_A, S_K1, S_M0B)
    gemm_loader(e, [(16, su, mk(R_B)), (16, su, mk(R_C)), (1, sux, issx)])
    e(lend + ":")


def float_bits(x):
    import struct
    return struct.unpack("<I", struct.pack("<f", x))[0]


def cmul(e, dr, di, ar, ai, br, bi, t):
    e(f"v_mul_f32 v{t}, v{ai}, v{bi}")
    e(f"v_mul_f32 v{t+1}, v{ar}, v{bi}")
    e(f"v_fma_f32 v{t}, v{ar}, v{br}, -v{t}")
    e(f"v_fma_f32 v{di}, v{ai}, v{br}, v{t+1}")
    e(f"v_mov_b32 v{dr}, v{t}")


def cfma(e, hr, hi, lr, li, ur, ui, t):
    e(f"v_fma_f32 v{t}, -v{li}, v{hi}, v{ur}")
    e(f"v_fma_f32 v{t+1}, v{li}, v{hr}, v{ui}")
    e(f"v_fma_f32 v{hr}, v{lr}, v{hr}, v{t}")
    e(f"v_fma_f32 v{hi}, v{lr}, v{hi}, v{t+1}")


def group1(e):
    AD = V_AD
    t0, t1, t2, t3 = VT[0], VT[1], VT[2], VT[3]
    LR, LI, GR, GI, L32R, L32I, L256R, L256I = range(V_PAR, V_PAR + 8)
    CSR, CSI, PSR, PSI = 28, 29, 30, 31
    STG = 49152
    e.srd(R_A, P_XA, 0x400000)
    e(f"s_bitcmp1_b32 s{S_W8}, 1")
    e(f"s_cselect_b64 s[{R_B}:{R_B+1}], s[{P_BIM}:{P_BIM+1}], s[{P_BRE}:{P_BRE+1}]")
    e(f"s_mov_b32 s{R_B+2}, 0x200000"); e(f"s_mov_b32 s{R_B+3}, 0x20000")
    noinit = e.lab("noinit")
    e(f"s_lshl_b32 s{S_T0}, s2, 3"); e(f"s_add_u32 s{S_T0}, s{S_T0}, s{S_W8}")
    e(f"s_cmp_lg_u32 s{S_T0}, 7"); e(f"s_cbranch_scc1 {noinit}")
    for i in range(4): e(f"v_mov_b32 v{4+i}, 0")
    e(f"v_lshlrev_b32 v{t0}, 4, v{V_LANE}")
    for i in range(WS_FEND // 1024):
        e(f"s_mov_b32 s{S_T0}, {1024*i}")
        e(f"buffer_store_dwordx4 v[4:7], v{t0}, {sr(R_WS)}, s{S_T0} offen sc1")
    e("s_waitcnt vmcnt(0)")
    e(f"v_mov_b32 v{t0}, 1")
    e("s_mov_b64 exec, 1")
    e(f"buffer_store_dword v{t0}, off, {sr(R_DBG)}, 0 sc1")
    e("s_mov_b64 exec, -1")
    e(noinit + ":")
    e(f"s_lshl_b32 s{S_T1}, s{S_TC}, 8")
    e(f"s_lshr_b32 s{S_T2}, s{S_W8}, 1"); e(f"s_lshl_b32 s{S_T2}, s{S_T2}, 6"); e(f"s_add_u32 s{S_T1}, s{S_T1}, s{S_T2}")
    e(f"s_and_b32 s{S_T3}, s{S_W8}, 1"); e(f"s_lshl_b32 s{S_T3}, s{S_T3}, 4"); e(f"s_add_u32 s{S_T1}, s{S_T1}, s{S_T3}")
    kc_dma(e, AD, 4, S_T1, step_rows=4, perm=True)
    e(f"s_lshl_b32 s{S_T1}, s{S_CB}, 6")
    e(f"s_lshr_b32 s{S_T2}, s{S_W8}, 2"); e(f"s_lshl_b32 s{S_T2}, s{S_T2}, 5"); e(f"s_add_u32 s{S_K1}, s{S_T1}, s{S_T2}")
    e(f"s_add_u32 s{S_T1}, s{S_K1}, s{S_T3}")
    kc_dma(e, AD+4, 2, S_T1)
    e(f"s_lshl_b32 s{S_M0A}, s{S_W8}, 12")
    e(f"s_lshl_b32 s{S_M0B}, s{S_W8}, 11"); e(f"s_add_u32 s{S_M0B}, s{S_M0B}, 32768")
    def dmas():
        g = [[f"s_add_u32 m0, s{S_SLOT}, s{S_M0A}", "s_nop 0"] + [f"buffer_load_dwordx4 v{AD+i}, {sr(R_A)}, s{S_K0} offen offset:{1024*i} lds" for i in range(2)],
             [f"buffer_load_dwordx4 v{AD+i}, {sr(R_A)}, s{S_K0} offen offset:{1024*i} lds" for i in range(2, 4)],
             [f"s_add_u32 m0, s{S_SLOT}, s{S_M0B}", "s_nop 0"] + [f"buffer_load_dwordx4 v{AD+4+i}, {sr(R_B)}, s{S_K0} offen offset:{1024*i} lds" for i in range(2)]]
        return g
    e(f"v_and_b32 v{t0}, 31, v{V_LANE}")
    e(f"v_add_u32 v{t0}, s{S_K1}, v{t0}")
    e(f"v_lshlrev_b32 v32, 3, v{t0}")
    e(f"v_lshlrev_b32 v{t0}, 1, v{t0}")
    e(f"global_load_ushort v{LR}, v{t0}, s[{P_LRE}:{P_LRE+1}]")
    e(f"global_load_ushort v{LI}, v{t0}, s[{P_LIM}:{P_LIM+1}]")
    e(f"global_load_ushort v{GR}, v{t0}, s[{P_LDT}:{P_LDT+1}]")
    for st in range(2):
        e(f"s_mov_b32 s{S_SLOT}, {st*STG}"); e(f"s_mov_b32 s{S_K0}, {128*st}")
        e(dmas())
    e(f"s_and_b32 s{S_T1}, s{S_W8}, 3"); e(f"s_lshl_b32 s{S_T1}, s{S_T1}, 13")
    kc_read(e, AD+8, S_T1)
    e(f"s_lshr_b32 s{S_T1}, s{S_W8}, 2"); e(f"s_lshl_b32 s{S_T1}, s{S_T1}, 13"); e(f"s_add_u32 s{S_T1}, s{S_T1}, 32768")
    kc_read(e, AD+12, S_T1)
    zero_acc(e)
    e("s_waitcnt vmcnt(12)")
    AR, AI = L32R, L32I
    e(f"v_lshlrev_b32 v{AR}, 16, v{LR}"); e(f"v_lshlrev_b32 v{AI}, 16, v{LI}"); e(f"v_lshlrev_b32 v{GR}, 16, v{GR}")
    log2e = float_bits(math.log2(math.e))
    e(f"v_mul_f32 v{GR}, {log2e:#x}, v{GR}")
    e(f"v_exp_f32 v{GR}, v{GR}")
    e("s_nop 0")
    e(f"v_cvt_pk_bf16_f32 v{GR}, v{GR}, v{GR}")
    e(f"v_lshlrev_b32 v{GR}, 16, v{GR}")
    e(f"v_mul_f32 v{t0}, v{GR}, v{AR}")
    e(f"v_mul_f32 v{t1}, v{GR}, v{AI}")
    e(f"v_mul_f32 v{t0}, {log2e:#x}, v{t0}")
    e(f"v_mul_f32 v{t1}, 0.15915494, v{t1}")
    e(f"v_exp_f32 v{t0}, v{t0}")
    e(f"v_rndne_f32 v{t2}, v{t1}")
    e(f"v_sub_f32 v{t1}, v{t1}, v{t2}")
    e(f"v_cos_f32 v{t2}, v{t1}")
    e(f"v_sin_f32 v{t3}, v{t1}")
    e("s_nop 0")
    e(f"v_mul_f32 v{LR}, v{t0}, v{t2}")
    e(f"v_mul_f32 v{LI}, v{t0}, v{t3}")
    e(f"v_max_f32 v{t0}, abs(v{AR}), abs(v{AI})")
    e(f"v_frexp_exp_i32_f32 v{t0}, v{t0}")
    e(f"v_sub_u32 v{t0}, 0, v{t0}")
    e(f"v_ldexp_f32 v{AR}, v{AR}, v{t0}")
    e(f"v_ldexp_f32 v{AI}, v{AI}, v{t0}")
    e(f"v_mul_f32 v{t1}, v{AR}, v{AR}")
    e(f"v_fmac_f32 v{t1}, v{AI}, v{AI}")
    e(f"v_rcp_f32 v{t1}, v{t1}")
    e(f"v_add_u32 v{t0}, 1, v{t0}")
    e(f"v_add_f32 v{t2}, -1.0, v{LR}")
    e(f"v_mul_f32 v{GR}, v{t2}, v{AR}")
    e(f"v_fmac_f32 v{GR}, v{LI}, v{AI}")
    e(f"v_mul_f32 v{GI}, v{t2}, v{AI}")
    e(f"v_fma_f32 v{GI}, v{LI}, v{AR}, -v{GI}")
    e(f"v_mul_f32 v{GR}, v{GR}, v{t1}")
    e(f"v_mul_f32 v{GI}, v{GI}, v{t1}")
    e(f"v_ldexp_f32 v{GR}, v{GR}, v{t0}")
    e(f"v_ldexp_f32 v{GI}, v{GI}, v{t0}")
    cmul(e, L32R, L32I, LR, LI, LR, LI, t0)
    for i in range(4): cmul(e, L32R, L32I, L32R, L32I, L32R, L32I, t0)
    cmul(e, L256R, L256I, L32R, L32I, L32R, L32I, t0)
    for i in range(2): cmul(e, L256R, L256I, L256R, L256I, L256R, L256I, t0)
    def reads(buf, s):
        f = V_FR + 16 * buf
        return [f"ds_read_b128 {vr(f,4)}, v{AD+8+s}", f"ds_read_b128 {vr(f+8,4)}, v{AD+12+s}",
                f"ds_read_b128 {vr(f+12,4)}, v{AD+12+s} offset:4096", f"ds_read_b128 {vr(f+4,4)}, v{AD+8+s} offset:4096"]
    def mf(buf):
        f = V_FR + 16 * buf
        return [mfma(V_ACC + 16 * (2 * i + j), f + 4 * i, f + 8 + 4 * j) for i, j in ((0, 0), (0, 1), (1, 1), (1, 0))]
    e("s_waitcnt vmcnt(6)"); e("s_barrier")
    e.stamp(1)
    e(reads(0, 0))
    e(f"s_mov_b32 s{S_SLOT}, {2*STG}"); e(f"s_mov_b32 s{S_K0}, 256")
    e(f"s_mov_b32 s{S_T3}, 0")
    for dma, cnt in ((True, 14), (False, 2)):
        lp = e.lab("a1")
        e(f"s_mov_b32 s{S_CNT}, {cnt}")
        e(".p2align 3")
        e(lp + ":")
        g = dmas() if dma else [[], [], []]
        sal = [f"s_mov_b32 s{S_T2}, {STG}", f"s_cmp_eq_u32 s{S_T3}, {2*STG}", f"s_cmov_b32 s{S_T2}, {(-2*STG) & 0xffffffff:#x}", f"s_add_u32 s{S_T3}, s{S_T3}, s{S_T2}"]
        upd = lambda s: [f"v_add_u32 v{AD+8+s}, s{S_T2}, v{AD+8+s}", f"v_add_u32 v{AD+12+s}, s{S_T2}, v{AD+12+s}"]
        for s in range(3):
            e("s_waitcnt lgkmcnt(0)")
            r = reads(1 - (s & 1), s + 1); m = mf(s & 1)
            tail = (sal + upd(0) if s == 0 else upd(s)) + g[s]
            e([m[0], r[0], r[1], m[1], r[2], r[3]] + inter(m[2:], tail))
        e(f"s_waitcnt vmcnt({6 if dma else 0}) lgkmcnt(0)"); e("s_barrier")
        r = reads(0, 0); m = mf(1)
        tail = upd(3) + [f"s_add_u32 s{S_K0}, s{S_K0}, 128", f"s_add_u32 s{S_SLOT}, s{S_SLOT}, {STG}", f"s_cmp_eq_u32 s{S_SLOT}, {3*STG}",
                         f"s_cselect_b32 s{S_SLOT}, 0, s{S_SLOT}", f"s_sub_u32 s{S_CNT}, s{S_CNT}, 1", f"s_cmp_lg_u32 s{S_CNT}, 0"]
        e([m[0], r[0], r[1], m[1], r[2], r[3], m[2]] + tail + [m[3]])
        e(f"s_cbranch_scc1 {lp}")
    e.stamp(2)
    att_setup(e)
    poll_init(e, VT[0])
    poll(e, R_WS, "0", 64, 4, VT[0])
    e(f"s_lshl_b32 s{S_T1}, s{S_A}, 3"); e(f"s_add_u32 s{S_T1}, s{S_T1}, s{S_B}")
    e(f"s_lshl_b32 s{S_T0}, s{S_T1}, 2"); e(f"s_add_u32 s{S_T0}, s{S_T0}, {WS_FQ}")
    poll(e, R_WS, f"s{S_T0}", 1, 1, VT[0], stride=0)
    e("s_waitcnt lgkmcnt(0)")
    kv_issue(e, 0)
    e(f"s_lshl_b32 s{S_T1}, s{S_T1}, 3"); e(f"s_add_u32 s{S_T1}, s{S_T1}, s{S_W8}")
    e(f"s_lshl_b32 s{S_T1}, s{S_T1}, 11"); e(f"s_add_u32 s{S_T1}, s{S_T1}, {WS_Q}")
    e(f"v_lshlrev_b32 v{t0}, 4, v{V_LANE}")
    for q in range(2): e(f"buffer_load_dwordx4 {vr(V_Q+4*q,4)}, v{t0}, {sr(R_WS)}, s{S_T1} offen offset:{1024*q} sc1")
    kv_issue(e, 1)
    U = lambda i, p: V_ACC + 16 * (2 * (i >> 4) + p) + (i & 15)
    HR, HI = 4, 5
    e(f"v_mov_b32 v{HR}, v{U(0,0)}"); e(f"v_mov_b32 v{HI}, v{U(0,1)}")
    for i in range(1, 32): cfma(e, HR, HI, LR, LI, U(i, 0), U(i, 1), 6)
    e(f"v_lshrrev_b32 v{t1}, 5, v{V_LANE}")
    e(f"s_and_b32 s{S_T1}, s{S_W8}, 3"); e(f"s_lshl_b32 s{S_T1}, s{S_T1}, 1")
    e(f"v_add_u32 v33, s{S_T1}, v{t1}")
    e(f"v_and_b32 v{t0}, 0x1ff, v32")
    e(f"v_lshl_add_u32 v{t1}, v33, 9, v{t0}")
    e(f"ds_write_b64 v{t1}, v[{HR}:{HI}]")
    e("s_waitcnt vmcnt(4) lgkmcnt(0)"); e("s_barrier")
    for s in range(8): e(f"ds_read_b64 {vr(V_FR+2*s,2)}, v{t0} offset:{512*s}")
    e(f"v_mov_b32 v{CSR}, 0"); e(f"v_mov_b32 v{CSI}, 0"); e(f"v_mov_b32 v{PSR}, 1.0"); e(f"v_mov_b32 v{PSI}, 0")
    PR, PI = 34, 35
    e(f"v_mov_b32 v{PR}, v{L32R}"); e(f"v_mov_b32 v{PI}, v{L32I}")
    e("s_waitcnt lgkmcnt(0)")
    e(f"v_mov_b32 v{HR}, v{V_FR}"); e(f"v_mov_b32 v{HI}, v{V_FR+1}")
    for s in range(1, 8):
        e(f"v_cmp_eq_u32 vcc, {s}, v33")
        e("s_nop 1")
        e(f"v_cndmask_b32 v{CSR}, v{CSR}, v{HR}, vcc"); e(f"v_cndmask_b32 v{CSI}, v{CSI}, v{HI}, vcc")
        e(f"v_cndmask_b32 v{PSR}, v{PSR}, v{PR}, vcc"); e(f"v_cndmask_b32 v{PSI}, v{PSI}, v{PI}, vcc")
        cfma(e, HR, HI, L32R, L32I, V_FR+2*s, V_FR+2*s+1, 6)
        if s < 7: cmul(e, PR, PI, PR, PI, L32R, L32I, 6)
    nop = e.lab("nopub")
    e(f"s_cmp_lg_u32 s{S_LW}, 0"); e(f"s_cbranch_scc1 {nop}")
    e(f"s_lshl_b32 s{S_T0}, s{S_TC}, 13"); e(f"s_add_u32 s{S_T0}, s{S_T0}, {WS_E}")
    e("s_mov_b32 exec_hi, 0")
    e(f"buffer_store_dwordx2 v[{HR}:{HI}], v32, {sr(R_WS)}, s{S_T0} offen sc1")
    e("s_mov_b64 exec, -1")
    e(nop + ":")
    e.stamp(3)
    def eoff(e):
        e(f"s_lshr_b32 s{S_T1}, s{S_W8}, 2")
        e(f"s_lshl1_add_u32 s{S_T1}, s{S_CB}, s{S_T1}")
        e(f"s_lshl_b32 s{S_T1}, s{S_T1}, 5")
        e(f"s_add_u32 s{S_T1}, s{S_T1}, {WS_FE}")
    def eflag(e):
        sk = e.lab("ne")
        e(f"s_cmp_lg_u32 s{S_LW}, 0"); e(f"s_cbranch_scc1 {sk}")
        eoff(e)
        e(f"s_lshl2_add_u32 s{S_T0}, s{S_TC}, s{S_T1}")
        set_flag(e, f"s{S_T0}", VT[0])
        e(sk + ":")
    def fixup(e):
        e.stamp(8)
        eoff(e)
        poll(e, R_WS, f"s{S_T1}", 0, 1, VT[0], lim=S_TC)
        dl = e.lab("ldone")
        for c in range(7):
            e(f"s_cmp_le_u32 s{S_TC}, {c}"); e(f"s_cbranch_scc1 {dl}")
            e(f"s_mov_b32 s{S_T0}, {WS_E + 8192*c}")
            e(f"buffer_load_dwordx2 {vr(V_FR+2*c,2)}, v32, {sr(R_WS)}, s{S_T0} offen sc1")
        e(dl + ":")
        e(f"v_mov_b32 v{HR}, 0"); e(f"v_mov_b32 v{HI}, 0")
        e(f"s_lshr_b32 s{S_T0}, s{S_LW}, 1"); e(f"s_lshl1_add_u32 s{S_T0}, s{S_TC}, s{S_T0}")
        e(f"s_lshl_b32 s{S_T0}, s{S_T0}, 5"); e(f"s_add_u32 s{S_T0}, s{S_T0}, s{S_CB}")
        e(f"s_lshr_b32 s{S_T1}, s{S_W8}, 2"); e(f"s_lshl1_add_u32 s{S_T0}, s{S_T0}, s{S_T1}")
        e(f"s_and_b32 s{S_T1}, s{S_W8}, 1"); e(f"s_lshl1_add_u32 s{S_T0}, s{S_T0}, s{S_T1}")
        e(f"s_lshl_b32 s{S_T0}, s{S_T0}, 12"); e(f"s_add_u32 s{S_T0}, s{S_T0}, {WS_H}")
        e(f"s_add_u32 s{S_T1}, s{S_T0}, 0x40000")
        for u in range(4):
            e(f"v_xor_b32 v{AD+u}, {4*u}, v{V_LANE}"); e(f"v_lshlrev_b32 v{AD+u}, 4, v{AD+u}")
        e("s_waitcnt vmcnt(0)")
        dn = e.lab("cdone")
        for c in range(7):
            e(f"s_cmp_le_u32 s{S_TC}, {c}"); e(f"s_cbranch_scc1 {dn}")
            cfma(e, HR, HI, L256R, L256I, V_FR+2*c, V_FR+2*c+1, 6)
        e(dn + ":")
        cfma(e, HR, HI, PSR, PSI, CSR, CSI, 6)
        for i in range(32):
            ur, ui = U(i, 0), U(i, 1)
            cfma(e, HR, HI, LR, LI, ur, ui, 6)
            e(f"v_mul_f32 v{ur}, v{GI}, v{HI}")
            e(f"v_mul_f32 v{ui}, v{GI}, v{HR}")
            e(f"v_fma_f32 v{ur}, v{GR}, v{HR}, -v{ur}")
            e(f"v_fma_f32 v{ui}, -v{GR}, v{HI}, -v{ui}")
            if i & 7 == 7:
                u = i >> 3
                for p in range(2):
                    d = V_FR + 16 + 8 * u + 4 * p
                    for k in range(4): e(f"v_cvt_pk_bf16_f32 v{d+k}, v{U(8*u+2*k,p)}, v{U(8*u+2*k+1,p)}")
                    e(f"buffer_store_dwordx4 {vr(d,4)}, v{AD+u}, {sr(R_WS)}, s{S_T1 if p else S_T0} offen offset:{1024*u} sc1")
        e.stamp(9)
    def hflag(e):
        sk = e.lab("nh")
        e(f"s_cmp_lg_u32 s{S_W8}, 0"); e(f"s_cbranch_scc1 {sk}")
        e(f"s_lshl_b32 s{S_T0}, s{S_TC}, 6")
        e(f"s_lshl2_add_u32 s{S_T0}, s{S_CB}, s{S_T0}")
        e(f"s_add_u32 s{S_T0}, s{S_T0}, {WS_FH}")
        set_flag(e, f"s{S_T0}", VT[0])
        e(sk + ":")
    e.stamp(4)
    attention(e, {0: eflag, 2: hflag}, {1: fixup})
    e.stamp(5)
    att_finish(e, 1)
    o_flag(e, 1)
    e.stamp(6)
    lload, lend = e.lab("oload"), e.lab("oend")
    e(f"s_cmp_ge_u32 s{S_W8}, 4"); e(f"s_cbranch_scc1 {lload}")
    e(f"s_and_b32 s{S_T1}, s{S_W8}, 2")
    trw_read(e, AD+1, 16384, S_T1, 1, 4)
    e(f"s_and_b32 s{S_T1}, s{S_W8}, 1"); e(f"s_lshl_b32 s{S_T1}, s{S_T1}, 13")
    e(f"v_lshl_add_u32 v{AD}, v{V_LANE}, 4, s{S_T1}")
    zero_acc(e)
    rdA = lambda f, t, s, off: [f"ds_read_b128 {vr(f,4)}, v{AD} offset:{off+4096*t+1024*s}"]
    rdB = lambda f, t, s, off: [f"ds_read_b64_tr_b16 {vr(f+2*q,2)}, v{AD+1+t} offset:{off+4096*s+2048*q}" for q in range(2)]
    gemm_compute(e, 16, rdA, rdB, {6: [AD, AD+1, AD+2]})
    e.stamp(7)
    e(f"s_lshl_b32 s{S_T2}, s{S_A}, 20")
    e(f"s_lshl_b32 s{S_T3}, s{S_B}, 9")
    e(f"s_add_u32 s{S_T2}, s{S_T2}, s{S_T3}")
    e(f"s_add_u32 s{S_T2}, s{S_T2}, 4096")
    store_tile(e, S_T2)
    e(f"s_branch {lend}")
    e(lload + ":")
    e.srd(R_B, P_WO, 0x200000)
    lin_dma(e, AD, S_LW)
    e(f"s_lshl_b32 s{S_T1}, s{S_B}, 8")
    trw_dma(e, AD+4, S_T1, S_LW)
    e(f"s_lshl_b32 s{S_M0A}, s{S_LW}, 12")
    e(f"s_add_u32 s{S_M0B}, s{S_M0A}, 16384")
    def mksu(par):
        def su(e):
            e(f"s_lshl_b32 s{S_T0}, s{S_A}, 6"); e(f"s_add_u32 s{S_T0}, s{S_T0}, {WS_FO + 32*par}")
            poll(e, R_WS, f"s{S_T0}", 8, 1, VT[0])
            e(f"s_lshl_b32 s{S_K0}, s{S_A}, 18"); e(f"s_add_u32 s{S_K0}, s{S_K0}, {WS_O + 0x4000*par}")
            e(f"s_mov_b32 s{S_K1}, {0x20000*par}")
        return su
    def iss(e):
        dma4(e, [AD]*4, R_WS, S_K0, S_M0A, "sc1")
        dma4(e, [AD+4, AD+5, AD+6, AD+7], R_B, S_K1, S_M0B)
        e(f"s_add_u32 s{S_K0}, s{S_K0}, 0x8000"); e(f"s_add_u32 s{S_K1}, s{S_K1}, 0x40000")
    gemm_loader(e, [(8, mksu(0), iss), (8, mksu(1), iss)])
    e("s_barrier")
    e(lend + ":")


def generate(cfg, header):
    e = E(cfg)
    k = NAME + "_kernel"
    e.L.append(header.rstrip("\n"))
    e.L.append(f"; @launch grid=(256,1,1) block=(512,1,1) lds={LDS_BYTES}")
    e.L.append('.amdgcn_target "amdgcn-amd-amdhsa--gfx950"')
    e.L += [".text", f".globl {k}", ".p2align 8", f".type {k},@function", k + ":"]
    e("s_cmp_ge_u32 s2, 256"); e("s_cbranch_scc1 L_exit")
    e("s_load_dwordx16 s[4:19], s[0:1], 0")
    e("s_load_dwordx16 s[20:35], s[0:1], 64")
    e("s_load_dwordx2 s[36:37], s[0:1], 128")
    e("v_lshrrev_b32 v1, 6, v0")
    e("v_and_b32 v0, 63, v0")
    e(f"v_readfirstlane_b32 s{S_W8}, v1")
    x, j, g = S_T0, S_T1, S_T3
    e(f"s_and_b32 s{x}, s2, 7"); e(f"s_lshr_b32 s{j}, s2, 3")
    if not cfg.mixed:
        e(f"s_lshr_b32 s{g}, s{x}, 2"); e(f"s_and_b32 s{x}, s{x}, 3")
        e(f"s_and_b32 s{S_B}, s{j}, 7"); e(f"s_lshr_b32 s{j}, s{j}, 3")
        e(f"s_lshl2_add_u32 s{S_A}, s{x}, s{j}")
        e(f"s_and_b32 s{S_TC}, s{S_A}, 7")
        e(f"s_lshr_b32 s{x}, s{x}, 1"); e(f"s_lshl3_add_u32 s{S_CB}, s{x}, s{S_B}")
    else:
        e(f"s_lshr_b32 s{g}, s{j}, 4")
        e(f"s_and_b32 s{S_T2}, s{j}, 3"); e(f"s_bfe_u32 s{j}, s{j}, 0x20002")
        e(f"s_lshr_b32 s{S_CNT}, s{x}, 1"); e(f"s_and_b32 s{x}, s{x}, 1")
        e(f"s_lshl2_add_u32 s{S_A}, s{S_CNT}, s{j}"); e(f"s_lshl2_add_u32 s{S_B}, s{x}, s{S_T2}")
        e(f"s_lshl2_add_u32 s{S_TC}, s{x}, s{j}"); e(f"s_lshl2_add_u32 s{S_CB}, s{S_CNT}, s{S_T2}")
    e(f"s_and_b32 s{S_LW}, s{S_W8}, 3")
    e("s_waitcnt lgkmcnt(0)")
    if cfg.prof:
        for i in range(16): e(f"s_mov_b32 s{S_PROF+i}, 0")
    e.rstamp(14); e.stamp(0)
    e.srd(R_WS, P_WS, WS_SIZE); e.srd(R_OUT, P_OUT, 0x1000000); e.srd(R_DBG, P_DBG, 256)
    e(f"s_cmp_lg_u32 s{g}, 0"); e("s_cbranch_scc1 L_group2")
    group1(e)
    e("s_branch L_fin")
    e("L_group2:")
    group2(e)
    e("L_fin:")
    if cfg.prof:
        e("s_waitcnt vmcnt(0)")
        e.stamp(13); e.rstamp(15)
        e(f"s_lshl_b32 s{S_T0}, s2, 3"); e(f"s_add_u32 s{S_T0}, s{S_T0}, s{S_W8}")
        e(f"s_lshl_b32 s{S_T0}, s{S_T0}, 6"); e(f"s_add_u32 s{S_T0}, s{S_T0}, {WS_PROF}")
        e("s_mov_b64 exec, 1")
        for i in range(16):
            e(f"v_mov_b32 v1, s{S_PROF+i}")
            e(f"buffer_store_dword v1, off, {sr(R_WS)}, s{S_T0} offset:{4*i}")
    e("L_exit:")
    e("s_endpgm")
    e.L += ['.section .rodata,"a"', ".p2align 6", f".amdhsa_kernel {k}",
            "  .amdhsa_next_free_vgpr 256", "  .amdhsa_next_free_sgpr 102", "  .amdhsa_accum_offset 256",
            "  .amdhsa_group_segment_fixed_size 0", "  .amdhsa_kernarg_size 136", "  .amdhsa_user_sgpr_count 2",
            "  .amdhsa_user_sgpr_kernarg_segment_ptr 1", "  .amdhsa_system_sgpr_workgroup_id_x 1",
            "  .amdhsa_float_denorm_mode_32 3", ".end_amdhsa_kernel"]
    return "\n".join(e.L) + "\n"


def header():
    L = []
    for l in open(f"cdna_kernels/{NAME}.s.ref"):
        if not l.startswith(";"): break
        if "@launch" in l or "Override launch" in l or "grid=ceil" in l: continue
        L.append(l)
    return "".join(L)


if __name__ == "__main__":
    cfg = Cfg()
    out = f"cdna_kernels/{NAME}.s"
    for a in sys.argv[1:]:
        if a.startswith("out="): out = a[4:]
        else:
            k, v = a.split("="); setattr(cfg, k, type(getattr(cfg, k))(int(v)))
    open(out, "w").write(generate(cfg, header()))
    print("wrote", out)
```

```python
import sys, math, struct

NAME = "concat_heads__ssm_conv_s5__grouped_kv_mqa__prompt"

class Cfg:
    prof = 0
    mixed = 0
    spin = 400000
    force_slow = 0
    rot = 41
    pf1 = 3
    a1prio = 1
    attprio = 1
    pload = 0
    pstage = 0
    alt = 1
    hearly = 8
    fixprio = 2
    full0 = 1
    ntkv = 0
    pf = 1
    fix = 1
    codepf = 1
    diag = -1
    probe = -1
    pwarm = 0
    pstride = 7
    poff = 0x80000
    dgrp = 1
    dwave = 0
    sc1out = 3

WS_FKV = 0x0000
WS_FE  = 0x0400
WS_FQ  = 0x0800
WS_FH  = 0x1000
WS_FO  = 0x1400
WS_FEND = 0x3400
WS_KV  = 0x10000
WS_E   = 0x60000
WS_Q   = 0x200000
WS_O   = 0x400000
WS_H   = 0x800000
WS_PROF = 0x1000000
WS_SIZE = 0x10000000

P_XA, P_LRE, P_LIM, P_BRE, P_BIM, P_CRE, P_CIM, P_LDT = 4, 6, 8, 10, 12, 14, 16, 18
P_DSK, P_XB, P_WQ, P_WK, P_WV, P_WO, P_OUT, P_DBG, P_WS = 20, 22, 24, 26, 28, 30, 32, 34, 36
S_W8, S_A, S_B = 38, 39, 3
R_WS, R_A, R_B, R_C, R_OUT, R_DBG, R_KV = 40, 44, 48, 52, 56, 60, 64
S_TC, S_CB = 68, 69
S_CNT, S_K0, S_K1, S_M0A, S_M0B, S_SLOT, S_SPIN = 70, 71, 72, 73, 74, 75, 76
S_T0, S_T1, S_T2, S_T3 = 77, 78, 79, 80
S_LW, S_KI, S_ROT = 81, 82, 83
S_CI = 0
S_X1 = 1
S_AK, S_AM, S_AS = 84, 85, 86
S_PROF = 87
NPROF = 13

RING = [0x20000, 0x18000, 0x10000]
LDS_BYTES = 163840

V_LANE = 0
VT = [1, 2, 3, 4, 5, 6, 7]
V_AD = 8
V_KVOFF, V_CUR, V_NXT, V_IDX = 36, 37, 38, 39
V_ONES, V_L, V_O, V_Q = 40, 44, 48, 64
V_K0, V_K1, V_V0, V_V1 = 72, 76, 80, 84
V_S = [88, 104]
V_PAR = 120
FB = [64, 128]
V_ACC = 192


def vr(a, n): return f"v[{a}:{a+n-1}]"
def sr(a, n=4): return f"s[{a}:{a+n-1}]"
def float_bits(x): return struct.unpack("<I", struct.pack("<f", x))[0]


class E:
    def __init__(self, cfg):
        self.L = []; self.cfg = cfg; self.uid = 0; self.outl = []; self.grp = 0
    def __call__(self, s):
        if isinstance(s, (list, tuple)):
            for x in s: self(x)
        elif s.endswith(":"): self.L.append(s)
        else: self.L.append("    " + s)
    def lab(self, p):
        self.uid += 1; return f"L_{p}_{self.uid}"
    def srd(self, r, p, size):
        self(f"s_mov_b32 s{r}, s{p}"); self(f"s_mov_b32 s{r+1}, s{p+1}")
        self(f"s_mov_b32 s{r+2}, {size:#x}"); self(f"s_mov_b32 s{r+3}, 0x20000")
    def stamp(self, i, real=None):
        if self.cfg.diag >= 0:
            if i == 11 or (i == self.cfg.diag and self.grp in (0, self.cfg.dgrp)):
                self("s_memrealtime s[100:101]"); self("s_waitcnt lgkmcnt(0)"); self(f"s_mov_b32 s{S_PROF+1}, s100")
                if i == 11: self(f"s_mov_b32 s{S_PROF}, s100")
            return
        if not self.cfg.prof: return
        if self.cfg.prof == 3 and i not in (11, 12): return
        if self.cfg.pload and i < 10 and i != 0: return
        if self.cfg.pstage and i < 10:
            if i == 4: i = 0
            elif i == 5: i = 9
            else: return
        if i >= 100: i -= 100
        real = (self.cfg.prof == 2) if real is None else real
        self("s_memrealtime s[100:101]" if real else "s_memtime s[100:101]")
        self("s_waitcnt lgkmcnt(0)"); self(f"s_mov_b32 s{S_PROF+i}, s100")
    def only(self, cond, fn):
        sk = self.lab("sk")
        if cond == "hi": self(f"s_cmp_lt_u32 s{S_W8}, 4")
        elif cond == "lo": self(f"s_cmp_ge_u32 s{S_W8}, 4")
        else: self(f"s_cmp_lg_u32 s{S_W8}, {cond}")
        self(f"s_cbranch_scc1 {sk}")
        fn(self)
        self(sk + ":")
    def hook(self, hooks, cnt):
        if not hooks: return []
        hl, hr = self.lab("hk"), self.lab("hkr")
        self.outl.append((hl, hr, hooks, cnt))
        return [f"s_bitcmp1_b32 {sum(1 << s for s in hooks)}, s{cnt}", f"s_cbranch_scc1 {hl}", hr + ":"]
    def flush(self):
        while self.outl:
            hl, hr, hooks, cnt = self.outl.pop(0)
            self(hl + ":")
            if callable(hooks):
                hooks(self); self(f"s_branch {hr}"); continue
            keys = sorted(hooks); labs = {k: self.lab("hn") for k in keys}
            for k in keys[1:]:
                self(f"s_cmp_eq_u32 s{cnt}, {k}"); self(f"s_cbranch_scc1 {labs[k]}")
            for k in keys:
                self(labs[k] + ":"); hooks[k](self); self(f"s_branch {hr}")


def inter(m, other, front=None):
    n = front or len(m); L = []; k = 0
    for i, x in enumerate(m):
        L.append(x)
        e = min(len(other), (len(other) * (i + 1) + n - 1) // n)
        L += other[k:e]; k = e
    return L


def mfma(d, a, b, c=None):
    c = vr(d, 16) if c is None else c
    return f"v_mfma_f32_32x32x16_bf16 {vr(d,16)}, {vr(a,4)}, {vr(b,4)}, {c}"

def m16(d, a, b, c=None):
    c = vr(d, 4) if c is None else c
    return f"v_mfma_f32_16x16x32_bf16 {vr(d,4)}, {vr(a,4)}, {vr(b,4)}, {c}"


class Poll:
    def __init__(self, srd, soff, n, width, va, vd):
        self.srd, self.soff, self.n, self.w, self.va, self.vd = srd, soff, n, width, va, vd
    def load(self, e):
        ld = {1: "buffer_load_dword", 4: "buffer_load_dwordx4"}[self.w]
        dst = f"v{self.vd}" if self.w == 1 else vr(self.vd, 4)
        e(f"{ld} {dst}, v{self.va}, {sr(self.srd)}, {self.soff} offen sc1")
    def issue(self, e):
        if isinstance(self.n, int) and self.n < 64:
            e(f"v_min_u32 v{self.va}, {self.n-1}, v{V_LANE}"); e(f"v_lshlrev_b32 v{self.va}, {2 if self.w == 1 else 4}, v{self.va}")
        elif isinstance(self.n, int):
            e(f"v_lshlrev_b32 v{self.va}, {2 if self.w == 1 else 4}, v{V_LANE}")
        else:
            e(f"v_and_b32 v{self.va}, 7, v{V_LANE}"); e(f"v_lshlrev_b32 v{self.va}, 2, v{self.va}")
        self.load(e)
    def test(self, e):
        d = self.vd
        if self.w == 4:
            e(f"v_and_b32 v{d}, v{d}, v{d+1}"); e(f"v_and_b32 v{d+2}, v{d+2}, v{d+3}"); e(f"v_and_b32 v{d}, v{d}, v{d+2}")
        e(f"v_cmp_ne_u32 vcc, 1, v{d}")
        if isinstance(self.n, int): e("s_mov_b64 s[100:101], -1")
        else: e(f"s_bfm_b64 s[100:101], {self.n}, 0")
        e("s_and_b64 vcc, vcc, s[100:101]")
    def check(self, e):
        self.test(e)
        hl, hr = e.lab("spin"), e.lab("spinr")
        e(f"s_cbranch_scc1 {hl}"); e(hr + ":")
        def body(e):
            lp = e.lab("sp")
            e(f"s_mov_b32 s{S_SPIN}, {e.cfg.spin}")
            e(lp + ":")
            e("s_sleep 1")
            self.load(e)
            e("s_waitcnt vmcnt(0)")
            self.test(e)
            e(f"s_cbranch_scc0 {hr}")
            e(f"s_sub_u32 s{S_SPIN}, s{S_SPIN}, 1"); e(f"s_cmp_lg_u32 s{S_SPIN}, 0"); e(f"s_cbranch_scc1 {lp}")
        e.outl.append((hl, hr, body, None))
    def block(self, e):
        self.issue(e); e("s_waitcnt vmcnt(0)"); self.check(e)


def set_flag(e, soff, vt):
    e(f"v_mov_b32 v{vt}, 1")
    e("s_mov_b64 exec, 1")
    e(f"buffer_store_dword v{vt}, off, {sr(R_WS)}, {soff} sc1")
    e("s_mov_b64 exec, -1")


def touch(e, srd, soff, flags=""):
    e(f"v_lshlrev_b32 v{VT[0]}, 7, v{V_LANE}")
    e(f"buffer_load_dword v7, v{VT[0]}, {sr(srd)}, s{soff} offen {flags}".rstrip())


def kc_dma(e, dst, rows, srow, perm=False):
    t0, t1, t2 = VT[0], VT[1], VT[2]
    e(f"v_lshrrev_b32 v{t0}, 3, v{V_LANE}")
    e(f"v_and_b32 v{t1}, 7, v{V_LANE}")
    e(f"v_lshrrev_b32 v{t2}, 1, v{t0}")
    e(f"v_xor_b32 v{t1}, v{t1}, v{t2}")
    if perm:
        e(f"v_and_b32 v{t2}, 1, v{t2}")
        e(f"v_and_b32 v{t0}, 1, v{t0}")
        e(f"v_lshl_add_u32 v{t0}, v{t0}, 4, v{t2}")
        e(f"v_and_b32 v{t2}, 32, v{V_LANE}")
        e(f"v_add_u32 v{t0}, v{t0}, v{t2}")
    e(f"v_add_lshl_u32 v{t0}, v{t0}, s{srow}, 11")
    e(f"v_lshl_add_u32 v{dst}, v{t1}, 4, v{t0}")
    e(f"v_xor_b32 v{t0}, 64, v{dst}")
    for i in range(1, len(rows)):
        e(f"v_add_u32 v{dst+i}, {rows[i]*2048 - 1024*i}, v{t0 if i & 1 else dst}")


def kc_read32(e, dst, sbase):
    t0, t1, t2 = VT[0], VT[1], VT[2]
    e(f"v_and_b32 v{t0}, 31, v{V_LANE}")
    e(f"v_lshrrev_b32 v{t1}, 5, v{V_LANE}")
    e(f"v_bfe_u32 v{t2}, v{V_LANE}, 1, 3")
    e(f"v_xor_b32 v{t1}, v{t1}, v{t2}")
    e(f"v_lshlrev_b32 v{t1}, 4, v{t1}")
    e(f"v_lshl_add_u32 v{t1}, v{t0}, 7, v{t1}")
    e(f"v_add_u32 v{dst}, s{sbase}, v{t1}")
    for s in range(1, 4): e(f"v_xor_b32 v{dst+s}, {32*s}, v{dst}")


def kc_read(e, outs):
    t0, t1, t2 = VT[0], VT[1], VT[2]
    e(f"v_and_b32 v{t0}, 15, v{V_LANE}")
    e(f"v_lshrrev_b32 v{t1}, 4, v{V_LANE}")
    e(f"v_bfe_u32 v{t2}, v{V_LANE}, 1, 3")
    e(f"v_xor_b32 v{t1}, v{t1}, v{t2}")
    e(f"v_lshlrev_b32 v{t1}, 4, v{t1}")
    e(f"v_lshl_add_u32 v{t1}, v{t0}, 7, v{t1}")
    for dst, sbase in outs:
        e(f"v_add_u32 v{dst}, s{sbase}, v{t1}")
        e(f"v_xor_b32 v{dst+1}, 64, v{dst}")


def trw_dma(e, dst, scol2, lw=True):
    t0, t1, t2 = VT[0], VT[1], VT[2]
    e(f"v_lshrrev_b32 v{t0}, 4, v{V_LANE}")
    e(f"v_and_b32 v{t1}, 15, v{V_LANE}")
    e(f"v_lshlrev_b32 v{t2}, 1, v{t0}")
    e(f"v_xor_b32 v{t1}, v{t1}, v{t2}")
    if lw:
        e(f"s_lshl_b32 s{S_T0}, s{S_LW}, 4")
        e(f"v_add_lshl_u32 v{t0}, v{t0}, s{S_T0}, 11")
    else: e(f"v_lshlrev_b32 v{t0}, 11, v{t0}")
    e(f"v_lshl_add_u32 v{t0}, v{t1}, 4, v{t0}")
    e(f"v_add_u32 v{dst}, s{scol2}, v{t0}")
    e(f"v_xor_b32 v{t0}, 0x80, v{dst}")
    for i in range(1, 4):
        e(f"v_add_u32 v{dst+i}, {i*(4*2048-1024)}, v{t0 if i >> 1 else dst}")


def trw_read(e, dst, sc0, deltas):
    t0, t1, t2 = VT[0], VT[1], VT[2]
    e(f"v_bfe_u32 v{t0}, v{V_LANE}, 2, 2")
    e(f"v_lshrrev_b32 v{t1}, 4, v{V_LANE}")
    e(f"v_lshl_add_u32 v{t1}, v{t1}, 3, v{t0}")
    e(f"v_bfe_u32 v{t0}, v{V_LANE}, 2, 3")
    e(f"v_xor_b32 v{t0}, s{sc0}, v{t0}")
    e(f"v_lshlrev_b32 v{t0}, 5, v{t0}")
    e(f"v_lshl_add_u32 v{t1}, v{t1}, 8, v{t0}")
    e(f"v_and_b32 v{t2}, 3, v{V_LANE}")
    e(f"v_lshl_add_u32 v{dst}, v{t2}, 3, v{t1}")
    for i in range(1, 4): e(f"v_xor_b32 v{dst+i}, {32*deltas[i]}, v{dst}")


def rd_trw(ad): return lambda f, t, s, off: [f"ds_read_b64_tr_b16 {vr(f+2*q,2)}, v{ad+t} offset:{off+8192*s+1024*q}" for q in range(2)]
def rd_kc(ad):  return lambda f, t, s, off: [f"ds_read_b128 {vr(f,4)}, v{ad+s} offset:{off+2048*t}"]


def lin_dma(e, dst):
    e(f"s_lshl_b32 s{S_T0}, s{S_LW}, 12")
    e(f"v_lshl_add_u32 v{dst}, v{V_LANE}, 4, s{S_T0}")


def gemm_compute(e, nst, rdA, rdB, flips, hooks=None):
    def reads(buf, off):
        A = [rdA(FB[buf] + 8*t + 4*s, t, s, off) for t in range(4) for s in range(2)]
        B = [rdB(FB[buf] + 32 + 8*t + 4*s, t, s, off) for t in range(4) for s in range(2)]
        return sum(A[:2] + B + A[2:], [])
    def mf(buf):
        L = []
        for i in range(4):
            for jj in range(4):
                j = jj if i % 2 == 0 else 3 - jj
                for s in range(2):
                    L.append(m16(V_ACC + 4*(4*i + j), FB[buf] + 8*i + 4*s, FB[buf] + 32 + 8*j + 4*s))
        return L
    e("s_barrier")
    e(reads(0, 0))
    e(f"s_mov_b32 s{S_CNT}, 0")
    lp = e.lab("gloop")
    e(".p2align 3")
    e(lp + ":")
    def gaps(m, items):
        assert len(items) <= len(m)
        for k, x in enumerate(m):
            e(x)
            if k < len(items): e(items[k])
    h = e.hook(hooks, S_CNT)
    e("s_waitcnt lgkmcnt(0)")
    gaps(mf(0), ["s_barrier"] + reads(1, 32768) + [f"v_xor_b32 v{r}, 0x10000, v{r}" for r in flips] + h[:1])
    e("s_waitcnt lgkmcnt(0)")
    it = [h[1:] + ["s_barrier"]] + reads(0, 0) + [f"s_add_u32 s{S_CNT}, s{S_CNT}, 1", f"s_cmp_lg_u32 s{S_CNT}, {nst//2}"]
    gaps(mf(1), it)
    e(f"s_cbranch_scc1 {lp}")


def slot_adv(e):
    e(f"s_add_u32 s{S_SLOT}, s{S_SLOT}, 0x8000"); e(f"s_and_b32 s{S_SLOT}, s{S_SLOT}, 0x1ffff")


class Cap:
    def __init__(self): self.L = []
    def __call__(self, s):
        if isinstance(s, (list, tuple)):
            for x in s: self(x)
        else: self.L.append(s)


def gemm_loader(e, rounds, issue, hooks=None, tail=None, per=8, split=2):
    e.ngemm = getattr(e, "ngemm", 0) + 1
    if e.cfg.pload and (e.ngemm - 1) % 2 + 1 == e.cfg.pload:
        e.stamp(100)
        rr = [0, 1, 2, 3, 5, 6, 7, 9, 12] if rounds < 20 else [0, 1, 2, 5, 9, 13, 17, 21, 28]
        hooks = dict(hooks or {})
        for n, k in enumerate(rr): hooks[k] = both(lambda e, n=n: e.stamp(101 + n), hooks.get(k, lambda e: None))
    c = Cap(); issue(c)
    pos = [k for k, x in enumerate(c.L) if x.startswith("buffer_load")]
    cut = pos[split]
    lp, l0 = e.lab("lloop"), e.lab("lloop0")
    e(f"s_mov_b32 s{S_CNT}, 0")
    if e.cfg.full0:
        e(c.L)
        e(f"s_waitcnt vmcnt({2*per})"); e("s_barrier")
        e(f"s_branch {l0}")
    e(lp + ":")
    e(c.L[:cut])
    e(f"s_waitcnt vmcnt({per+split})"); e("s_barrier")
    e(c.L[cut:])
    e(l0 + ":")
    e(e.hook(hooks, S_CNT))
    e(f"s_add_u32 s{S_CNT}, s{S_CNT}, 1"); e(f"s_cmp_lg_u32 s{S_CNT}, {rounds}"); e(f"s_cbranch_scc1 {lp}")
    n = tail(e) if tail else 0
    for w in (per, 0):
        e(f"s_waitcnt vmcnt({w+n})"); e("s_barrier")


def dma4(e, vregs, srd, soff, m0s, flags=""):
    e(f"s_add_u32 m0, s{S_SLOT}, s{m0s}")
    e("s_nop 0")
    for i in range(4):
        e(f"buffer_load_dwordx4 v{vregs[i]}, {sr(srd)}, s{soff} offen offset:{1024*i} {flags} lds".replace("  ", " "))


def zero_acc(e):
    for i in range(64): e(f"v_mov_b32 v{V_ACC+i}, 0")


def store_tile(e, sa, sb, col0, sc1):
    t0, t1 = VT[0], VT[1]
    e(f"s_lshr_b32 s{S_T1}, s{S_W8}, 1")
    e(f"s_lshl1_add_u32 s{S_T0}, s{sa}, s{S_T1}")
    e(f"s_lshl_b32 s{S_T0}, s{S_T0}, 19")
    e(f"s_and_b32 s{S_T1}, s{S_W8}, 1")
    e(f"s_lshl1_add_u32 s{S_T1}, s{sb}, s{S_T1}")
    e(f"s_lshl_b32 s{S_T1}, s{S_T1}, 8")
    e(f"s_add_u32 s{S_T0}, s{S_T0}, s{S_T1}")
    e(f"v_and_b32 v{t0}, 15, v{V_LANE}")
    e(f"v_and_b32 v{t1}, 48, v{V_LANE}")
    e(f"v_lshl_add_u32 v{t0}, v{t0}, 13, v{t1}")
    for j in range(4):
        e(f"s_add_u32 s{S_T1}, s{S_T0}, {col0*4 + 16*j*8192}")
        for i in range(4):
            e(f"buffer_store_dwordx4 {vr(V_ACC+4*(4*i+j),4)}, v{t0}, {sr(R_OUT)}, s{S_T1} offen offset:{64*i}" + (" sc1" if sc1 else ""))


V_KVOFF2 = 35
S_AB = 6

def kv_dma():
    d = lambda v, i: f"buffer_load_dwordx4 v{v}, {sr(R_KV)}, s{S_AK} offen offset:{1024*i} sc1 lds"
    return [f"s_mov_b32 m0, s{S_AM}"] + [d(V_KVOFF, i) for i in range(4)] + [f"s_add_u32 m0, s{S_AM}, 0x1000"] + [d(V_KVOFF2, i) for i in range(4)]


def att_setup(e, role):
    e.srd(R_KV, P_WS, WS_KV + 0x40000)
    if role == "hi":
        e(f"s_lshl_b32 s{S_AB}, s{S_LW}, 13")
        e(f"v_lshl_add_u32 v{V_KVOFF}, v{V_LANE}, 4, s{S_AB}")
        e(f"v_add_u32 v{V_KVOFF2}, 0x1000, v{V_KVOFF}")
        e(f"s_add_u32 s{S_AM}, s{S_AB}, {RING[0]}")
        e(f"s_mov_b32 s{S_AK}, {WS_KV}")
    e(f"v_lshlrev_b32 v{V_CUR}, 4, v{V_LANE}")
    e(f"v_add_u32 v{V_NXT}, {RING[1]}, v{V_CUR}")
    e(f"v_add_u32 v{V_CUR}, {RING[0]}, v{V_CUR}")
    e(f"v_mov_b32 v{V_IDX}, 0xdddddddd")
    e(f"v_bfe_i32 v{V_ONES}, v{V_LANE}, 2, 1")
    e(f"v_and_b32 v{V_ONES+2}, 0x3f803f80, v{V_ONES}")
    e(f"v_xor_b32 v{V_ONES}, 0x3f803f80, v{V_ONES+2}")
    e(f"v_mov_b32 v{V_ONES+3}, v{V_ONES+2}")
    e(f"v_mov_b32 v{V_ONES+1}, v{V_ONES}")
    for i in range(4): e(f"v_mov_b32 v{V_L+i}, 0")


def kv_issue(e):
    L = kv_dma(); e(L[0]); e("s_nop 0"); e(L[1:6]); e("s_nop 0"); e(L[6:])


def zero16(d, z): return mfma(d, z, z, "0")


def pv(v, s):  return f"v_smfmac_f32_32x32x32_bf16 {vr(V_O,16)}, {vr(v,4)}, {vr(s,8)}, v{V_IDX}"
def rs(s):     return f"v_smfmac_f32_16x16x64_bf16 {vr(V_L,4)}, {vr(V_ONES,4)}, {vr(s,8)}, v{V_IDX}"


def attention(e, role, hm={}, hb={}, he={}, paced=None, vm=True):
    hi = role == "hi"
    def rd(reg, t, f):
        a, t = (V_CUR, t) if t < 8 else (V_NXT, t - 8)
        return f"ds_read_b128 {vr(reg,4)}, v{a} offset:{t*4096 + f*1024}"
    if e.cfg.pstage and hi:
        hb = {k: both(lambda e, k=k: e.stamp(101 + k), hb.get(k, lambda e: None)) for k in range(8)}
    if hi and e.cfg.attprio: e("s_setprio 1")
    e(rd(V_K0, 0, 0)); e(rd(V_K1, 0, 1))
    for i in range(4): e(f"v_mov_b32 v{V_V1+i}, 0")
    e(f"s_mov_b32 s{S_CNT}, 0")
    e(f"s_mov_b32 s{S_AS}, {RING[1]}")
    e(zero16(V_O, V_L)); e(zero16(V_S[1], V_L))
    if hi:
        e(f"s_mov_b32 s{S_AK}, {WS_KV + 0x8000}")
        e(f"s_add_u32 s{S_AM}, s{S_AB}, {RING[1]}")
    e("s_waitcnt lgkmcnt(0)")
    e(mfma(V_S[0], V_K0, V_Q, "0")); e(rd(V_K0, 1, 0))
    e(mfma(V_S[0], V_K1, V_Q + 4)); e(rd(V_K1, 1, 1))
    e("s_nop 10")
    lp = e.lab("att")
    dm = kv_dma()
    def body(extra):
        for t in range(8):
            S, Sn = V_S[t & 1], V_S[1 - (t & 1)]
            ex = lambda a, b: [f"v_exp_f32 v{S+i}, v{S+i}" for i in range(a, b)]
            x = {k: [] for k in "0q123"}
            if hi and t < 3: x["0"], x["2"], x["3"] = [dm[3*t]], [dm[3*t+1]], [dm[3*t+2]]
            if t == 3:
                if hi: x["0"] = [dm[9]]
                x["q"] = [f"s_sub_u32 s{S_AS}, s{S_AS}, 0x8000"]; x["2"] = [f"s_cmp_lt_u32 s{S_AS}, {RING[2]}"]
                x["3"] = [f"s_cselect_b32 s{S_AS}, {RING[0]}, s{S_AS}"]
            if t == 4:
                h = e.hook(hm, S_CNT)
                if h: x["0"] = h[:1]; x["q"] = h[1:]
                if hi: x["2"] = [f"s_add_u32 s{S_AK}, s{S_AK}, 0x8000"]; x["3"] = [f"s_add_u32 s{S_AM}, s{S_AB}, s{S_AS}"]
            w1 = "s_waitcnt lgkmcnt(2)"
            if t == 6:
                h = [] if extra else e.hook(hb, S_CNT)
                x["0"] = h[:1]; x["1"] = ["s_barrier"] + h[1:]
                if vm and not extra: w1 = "s_waitcnt vmcnt(0) lgkmcnt(2)"
            if t == 7:
                x["q"] = [f"s_add_u32 s{S_CNT}, s{S_CNT}, 1"]
            if extra: x["0"] = x["0"] + extra[t]
            e(ex(0, 2)); e(pv(V_V1, Sn + 8)); e(rd(V_V0, t, 2)); e(x["0"])
            e(ex(2, 5)); e(rs(Sn + 8)); e(rd(V_V1, t, 3)); e(w1); e(x["1"])
            e(ex(5, 6)); e(mfma(Sn, V_K0, V_Q, "0")); e(x["q"])
            e(ex(6, 9)); e(mfma(Sn, V_K1, V_Q + 4)); e("s_waitcnt lgkmcnt(0)")
            e(ex(9, 12)); e(pv(V_V0, S)); e(rd(V_K0, t + 2, 0)); e(x["2"])
            if t < 7:
                e(ex(12, 15)); e(rs(S)); e(rd(V_K1, t + 2, 1)); e(x["3"])
                e(ex(15, 16))
            else:
                e(ex(12, 16)); e(rd(V_K1, t + 2, 1))
                e(f"v_mov_b32 v{V_CUR}, v{V_NXT}")
                e(f"v_lshl_add_u32 v{V_NXT}, v{V_LANE}, 4, s{S_AS}")
                if extra:
                    e(rs(S)); e(f"s_branch {lp}")
                else:
                    e(e.hook({k + 1: v for k, v in he.items()}, S_CNT))
                    e(f"s_bitcmp1_b32 {0xff & ~(1 << paced[0] if paced else 0)}, s{S_CNT}")
                    e(rs(S))
                    e(f"s_cbranch_scc1 {lp}")
    e(".p2align 3")
    e(lp + ":")
    body(None)
    if paced:
        dn = e.lab("attd")
        e(f"s_cmp_eq_u32 s{S_CNT}, 8"); e(f"s_cbranch_scc1 {dn}")
        body(paced[1])
        e(dn + ":")
    e(pv(V_V1, V_S[1] + 8)); e(rs(V_S[1] + 8))
    if hi and e.cfg.attprio: e("s_setprio 0")


def att_slow(e):
    t0, t1 = VT[0], VT[1]
    S, M = V_S[0], V_S[1]
    e(f"v_lshlrev_b32 v{t0}, 4, v{V_LANE}")
    e(f"v_mov_b32 v{t1}, 0xff800000")
    e(f"s_mov_b32 s{S_T0}, {WS_KV}")
    l1 = e.lab("slow1")
    e(l1 + ":")
    e(f"buffer_load_dwordx4 {vr(V_K0,4)}, v{t0}, {sr(R_KV)}, s{S_T0} offen sc1")
    e(f"buffer_load_dwordx4 {vr(V_K1,4)}, v{t0}, {sr(R_KV)}, s{S_T0} offen offset:1024 sc1")
    e("s_waitcnt vmcnt(0)")
    e(mfma(S, V_K0, V_Q, "0")); e(mfma(S, V_K1, V_Q + 4))
    e("s_nop 15")
    for i in range(0, 16, 2): e(f"v_max3_f32 v{t1}, v{t1}, v{S+i}, v{S+i+1}")
    e(f"s_add_u32 s{S_T0}, s{S_T0}, 4096")
    e(f"s_cmp_lt_u32 s{S_T0}, {WS_KV + 0x40000}")
    e(f"s_cbranch_scc1 {l1}")
    e(f"v_mov_b32 v{M}, v{t1}")
    e("s_nop 1")
    e(f"v_permlane32_swap_b32 v{M}, v{t1}")
    e("s_nop 1")
    e(f"v_max_f32 v{t1}, v{t1}, v{M}")
    for i in range(16): e(f"v_sub_f32 v{M+i}, 0, v{t1}")
    for i in range(16): e(f"v_mov_b32 v{V_O+i}, 0")
    for i in range(4): e(f"v_mov_b32 v{V_L+i}, 0")
    e(f"s_mov_b32 s{S_T0}, {WS_KV}")
    l2 = e.lab("slow2")
    e(l2 + ":")
    for f, r in enumerate((V_K0, V_K1, V_V0, V_V1)):
        e(f"buffer_load_dwordx4 {vr(r,4)}, v{t0}, {sr(R_KV)}, s{S_T0} offen offset:{1024*f} sc1")
    e("s_waitcnt vmcnt(0)")
    e(mfma(S, V_K0, V_Q, vr(M, 16))); e(mfma(S, V_K1, V_Q + 4))
    e("s_nop 15")
    for i in range(16): e(f"v_exp_f32 v{S+i}, v{S+i}")
    e("s_nop 2")
    e(pv(V_V0, S)); e(pv(V_V1, S + 8)); e(rs(S)); e(rs(S + 8))
    e(f"s_add_u32 s{S_T0}, s{S_T0}, 4096")
    e(f"s_cmp_lt_u32 s{S_T0}, {WS_KV + 0x40000}")
    e(f"s_cbranch_scc1 {l2}")
    e("s_nop 15")


def att_finish(e, grp):
    t0, t1, t2 = VT[0], VT[1], VT[2]
    e(f"s_lshl_b32 s{S_T3}, s{S_A}, 3")
    e(f"s_add_u32 s{S_T3}, s{S_T3}, s{S_B}")
    e(f"s_and_b32 s{S_T1}, s{S_W8}, 2")
    e(f"s_lshr_b32 s{S_T2}, s{S_W8}, 2")
    e(f"s_add_u32 s{S_T1}, s{S_T1}, s{S_T2}")
    e(f"s_lshl3_add_u32 s{S_T3}, s{S_T3}, s{S_T1}")
    e(f"s_and_b32 s{S_T1}, s{S_W8}, 1")
    e(f"s_lshl2_add_u32 s{S_T3}, s{S_T3}, s{S_T1}")
    e(f"s_lshl_b32 s{S_T3}, s{S_T3}, 10")
    e(f"s_add_u32 s{S_T3}, s{S_T3}, {WS_O + (0x4000 if grp == 1 else 0)}")
    e(f"v_mov_b32 v{t1}, 0x2f800000")
    e("s_waitcnt lgkmcnt(0)")
    e(f"v_mov_b32 v{t0}, v{V_L}")
    for i in range(16): e(f"v_fmac_f32 v{t0}, 0, v{V_O+i}")
    e(f"v_cmp_ngt_f32 vcc, 0x5f800000, v{t0}")
    e(f"v_cmp_nge_f32 s[100:101], v{t0}, v{t1}")
    e("s_nop 1")
    e("s_or_b64 vcc, vcc, s[100:101]")
    hl, hr = e.lab("slow"), e.lab("slowr")
    e(f"s_branch {hl}" if e.cfg.force_slow else f"s_cbranch_scc1 {hl}")
    e(hr + ":")
    e.outl.append((hl, hr, att_slow, None))
    e(f"v_rcp_f32 v{t0}, v{V_L}")
    e(f"v_and_b32 v{t1}, 15, v{V_LANE}")
    e(f"v_lshrrev_b32 v{t2}, 5, v{V_LANE}")
    e(f"v_lshl_add_u32 v{t1}, v{t2}, 4, v{t1}")
    e(f"v_bfe_u32 v{t2}, v{V_LANE}, 4, 1")
    e(f"v_lshlrev_b32 v{t1}, 4, v{t1}")
    e(f"v_lshl_add_u32 v{t1}, v{t2}, 11, v{t1}")
    for i in range(16): e(f"v_mul_f32 v{V_O+i}, v{V_O+i}, v{t0}")
    for i in range(8): e(f"v_cvt_pk_bf16_f32 v{V_ONES+i}, v{V_O+2*i}, v{V_O+2*i+1}")
    e(f"buffer_store_dwordx4 {vr(V_ONES,4)}, v{t1}, {sr(R_WS)}, s{S_T3} offen sc1")
    e(f"buffer_store_dwordx4 {vr(V_ONES+4,4)}, v{t1}, {sr(R_WS)}, s{S_T3} offen offset:512 sc1")


def o_flag(grp, n):
    def f(e):
        e(f"s_lshl4_add_u32 s{S_T0}, s{S_A}, s{S_B}")
        e(f"s_lshl3_add_u32 s{S_T0}, s{S_T0}, s{S_W8}")
        e(f"s_lshl2_add_u32 s{S_T0}, s{S_T0}, {WS_FO + (256 if grp == 1 else 0)}")
        e(f"s_waitcnt vmcnt({n})")
        set_flag(e, f"s{S_T0}", VT[0])
    return f


def drain(e): e("s_waitcnt vmcnt(0)")


def urgent(fn):
    def f(e):
        e("s_setprio 2"); fn(e); e("s_setprio 0")
    return f


def late(e, poll, issue):
    hl, hr = e.lab("late"), e.lab("later")
    e(f"s_cmp_eq_u32 s{S_SLOT}, 0"); e(f"s_cbranch_scc1 {hl}"); e(hr + ":")
    def body(e):
        e.stamp(7)
        poll.block(e)
        lp = e.lab("latel")
        e(lp + ":"); issue(e)
        e(f"s_cmp_lg_u32 s{S_SLOT}, 0x10000"); e(f"s_cbranch_scc1 {lp}")
    e.outl.append((hl, hr, body, None))


def touch_round(e, srd, base, sbase=None, flags=""):
    sh = 13 if e.cfg.mixed else 12
    def f(e):
        e(f"s_lshl2_add_u32 s{S_T0}, s{S_CI}, s{S_LW}"); e(f"s_lshl_b32 s{S_T0}, s{S_T0}, {sh}")
        if base: e(f"s_add_u32 s{S_T0}, s{S_T0}, {base}")
        if sbase is not None: e(f"s_add_u32 s{S_T0}, s{S_T0}, s{sbase}")
        e(f"v_and_b32 v{VT[0]}, {(1 << (sh-7)) - 1}, v{V_LANE}"); e(f"v_lshlrev_b32 v{VT[0]}, 7, v{VT[0]}")
        e(f"buffer_load_dword v7, v{VT[0]}, {sr(srd)}, s{S_T0} offen {flags}".rstrip())
    f(e)


def both(*fns):
    def f(e):
        for g in fns: g(e)
    return f


def group2(e):
    cfg = e.cfg
    AD = V_AD
    t0, t1, t2 = VT[0], VT[1], VT[2]
    S_KT = S_X1
    e.srd(R_A, P_XB, 0x400000)
    e(f"s_bitcmp1_b32 s{S_B}, 0")
    e(f"s_cselect_b64 s[{R_B}:{R_B+1}], s[{P_WV}:{P_WV+1}], s[{P_WK}:{P_WK+1}]")
    e(f"s_mov_b32 s{R_B+2}, 0x10000"); e(f"s_mov_b32 s{R_B+3}, 0x20000")
    e(f"s_lshr_b32 s{S_T1}, s{S_B}, 1")
    e(f"s_lshl2_add_u32 s{S_KT}, s{S_A}, s{S_T1}")
    if cfg.rot & 1:
        def wt(e):
            e(f"s_and_b32 s{S_T0}, s{S_KT}, 7"); e(f"s_lshl_b32 s{S_T0}, s{S_T0}, 13")
            touch(e, R_B, S_T0)
        e.only(0, wt)
    e(f"s_lshl_b32 s{S_T1}, s{S_KT}, 5")
    kc_dma(e, AD, [0, 8, 16, 24], S_T1)
    e(f"v_lshlrev_b32 v{AD+4}, 4, v{V_LANE}")
    e(f"s_lshl_b32 s{S_SLOT}, s{S_W8}, 14")
    if cfg.rot & 1:
        e(f"s_lshl2_add_u32 s{S_T2}, s{S_B}, s{S_W8}"); e(f"s_and_b32 s{S_T2}, s{S_T2}, 7")
    else:
        e(f"s_mov_b32 s{S_T2}, s{S_W8}")
    e(f"s_lshl_b32 s{S_K0}, s{S_T2}, 8")
    e(f"s_lshl_b32 s{S_K1}, s{S_T2}, 13")
    for sub in range(2):
        e(f"s_mov_b32 s{S_M0A}, {4096*sub}")
        dma4(e, [AD, AD+1, AD+2, AD+3], R_A, S_K0, S_M0A, "nt" if cfg.ntkv & 1 else "")
        if sub == 0: e(f"s_add_u32 s{S_K0}, s{S_K0}, 128")
    for sub in range(2):
        e(f"s_mov_b32 s{S_M0A}, {8192 + 4096*sub}")
        dma4(e, [AD+4]*4, R_B, S_K1, S_M0A)
        if sub == 0: e(f"s_add_u32 s{S_K1}, s{S_K1}, 4096")
    kc_read32(e, AD+8, S_SLOT)
    e(f"s_and_b32 s{S_T1}, s{S_B}, 1")
    e(f"s_sub_u32 s{S_T2}, s{S_T1}, 1")
    e(f"v_bfe_u32 v{t0}, v{V_LANE}, 2, 2")
    e(f"v_lshrrev_b32 v{t1}, 5, v{V_LANE}")
    e(f"v_lshl_add_u32 v{t0}, v{t1}, 3, v{t0}")
    e(f"v_bfe_u32 v{t1}, v{V_LANE}, 4, 1")
    e(f"v_lshlrev_b32 v{t1}, 5, v{t1}")
    e(f"v_lshl_add_u32 v{t0}, v{t0}, 6, v{t1}")
    e(f"v_lshrrev_b32 v{t1}, 1, v{V_LANE}")
    e(f"v_xor_b32 v{t1}, v{t1}, v{V_LANE}")
    e(f"v_and_b32 v{t1}, 1, v{t1}")
    e(f"v_mul_u32_u24 v{t1}, 3, v{t1}")
    e(f"v_and_b32 v{t1}, s{S_T2}, v{t1}")
    e(f"v_xor_b32 v{t1}, v{t1}, v{V_LANE}")
    e(f"v_and_b32 v{t1}, 3, v{t1}")
    e(f"v_lshl_add_u32 v{t0}, v{t1}, 3, v{t0}")
    e(f"v_add_u32 v{AD+12}, s{S_SLOT}, v{t0}")
    e(f"s_lshl_b32 s{S_T0}, s{S_LW}, 12")
    e(f"s_add_u32 s{S_T0}, s{S_T0}, 0x20000")
    e(f"v_lshl_add_u32 v{AD+13}, v{V_LANE}, 4, s{S_T0}")
    QA = AD + 14
    XF, WF, KD = 64, 96, 128
    e.srd(R_C, P_WQ, 0x200000)
    e.srd(R_KV, P_WS, WS_KV + 0x40000)
    nt = 0
    if cfg.pf1 & 1:
        e(f"s_lshl3_add_u32 s{S_T0}, s{S_A}, s{S_B}"); e(f"s_lshl3_add_u32 s{S_T0}, s{S_T0}, s{S_W8}"); e(f"s_lshl_b32 s{S_T0}, s{S_T0}, 11")
        e(f"v_and_b32 v{t0}, 15, v{V_LANE}"); e(f"v_lshlrev_b32 v{t0}, 7, v{t0}")
        e(f"buffer_load_dword v34, v{t0}, {sr(R_C)}, s{S_T0} offen")
        nt = 1
    if not cfg.rot & 2: e(f"s_mov_b32 s{S_ROT}, 0")
    e(f"s_and_b32 s8, s{S_A}, {1 if cfg.rot & 32 else 0}")
    def qc(e):
        e(f"s_and_b32 s{S_T1}, s{S_W8}, 1"); e(f"s_lshl_b32 s{S_T1}, s{S_T1}, 1")
        trw_read(e, QA, S_T1, [0, 1, 4, 5])
        e(f"s_lshr_b32 s{S_T1}, s{S_W8}, 1"); e(f"s_lshl_b32 s{S_T1}, s{S_T1}, 13"); e(f"s_add_u32 s{S_T1}, s{S_T1}, 16384")
        kc_read(e, [(QA+4, S_T1)])
        att_setup(e, "lo")
        e(f"s_lshr_b32 s{S_KI}, s{S_W8}, 1"); e(f"s_add_u32 s{S_KI}, s{S_KI}, s{S_ROT}"); e(f"s_and_b32 s{S_KI}, s{S_KI}, 15"); e(f"s_xor_b32 s{S_KI}, s{S_KI}, s8")
        lx, ld = e.lab("prex"), e.lab("pred")
        e(f"s_bitcmp1_b32 s{S_W8}, 0"); e(f"s_cbranch_scc1 {lx}")
        e(f"s_lshl_b32 s{S_T1}, s{S_B}, 8")
        trw_dma(e, AD, S_T1, False)
        e.srd(R_B, P_WQ, 0x200000)
        e(f"s_lshl_b32 s{S_K0}, s{S_KI}, 17"); e(f"s_mov_b32 s{S_K1}, 0x8000")
        e(f"s_branch {ld}")
        e(lx + ":")
        e(f"s_lshl_b32 s{S_T1}, s{S_A}, 7")
        kc_dma(e, AD, [0, 8, 16, 24], S_T1)
        e.srd(R_B, P_XB, 0x400000)
        e(f"s_lshl_b32 s{S_K0}, s{S_KI}, 7"); e(f"s_mov_b32 s{S_K1}, 0x10000")
        e(ld + ":")
        for i in range(4): e(zero16(V_ACC+16*i, V_L))
        e(zero16(KD, V_L))
    def ql(e):
        e(f"s_lshl_b32 s{S_T1}, s{S_B}, 8")
        trw_dma(e, QA, S_T1)
        e(f"s_lshl2_add_u32 s{S_T1}, s{S_A}, s{S_LW}"); e(f"s_lshl_b32 s{S_T1}, s{S_T1}, 5")
        kc_dma(e, QA+4, [0, 8, 16, 24], S_T1)
        att_setup(e, "hi")
        e("s_barrier")
        for q in range(4): e(f"ds_read_b128 {vr(KD+4*q,4)}, v{AD+13} offset:{1024*q}")
    e.only("lo", qc); e.only("hi", ql)
    e(f"s_waitcnt vmcnt({8+nt})")
    for k in range(8): e(f"ds_read_b128 {vr(XF+4*k,4)}, v{AD+8+(k&3)} offset:{4096*(k>>2)}")
    e(f"s_waitcnt vmcnt({nt}) lgkmcnt(0)")
    e.stamp(1)
    for k in range(8):
        for q in range(2): e(f"ds_read_b64_tr_b16 {vr(WF+4*k+2*q,2)}, v{AD+12} offset:{8192+1024*k+256*q}")
        if k == 6: e("s_waitcnt lgkmcnt(8)")
    lv, lj = e.lab("kvv"), e.lab("kvj")
    e(f"s_bitcmp1_b32 s{S_B}, 0"); e(f"s_cbranch_scc1 {lv}")
    for k in range(8):
        if k in (3, 5, 7): e(f"s_waitcnt lgkmcnt({max(0, 12-2*k)})")
        e(mfma(KD, WF+4*k, XF+4*k))
    e(f"s_branch {lj}")
    e(lv + ":")
    for k in range(8):
        if k in (3, 5, 7): e(f"s_waitcnt lgkmcnt({max(0, 12-2*k)})")
        e(mfma(KD, XF+4*k, WF+4*k))
    e(lj + ":")
    e("s_nop 11")
    for q in range(4): e(f"ds_write_b128 v{AD+13}, {vr(KD+4*q,4)} offset:{1024*q}")
    e("s_waitcnt lgkmcnt(0)"); e("s_barrier")
    lload, lqend = e.lab("qload"), e.lab("qend")
    e(f"s_cmp_ge_u32 s{S_W8}, 4"); e(f"s_cbranch_scc1 {lload}")
    lp = e.lab("qpre")
    e(f"s_mov_b32 s{S_M0A}, 0")
    e(lp + ":")
    dma4(e, [AD, AD+1, AD+2, AD+3], R_B, S_K0, S_M0A)
    e(f"s_add_u32 s{S_K0}, s{S_K0}, s{S_K1}")
    e(f"s_add_u32 s{S_M0A}, s{S_M0A}, 0x1000"); e(f"s_cmp_lg_u32 s{S_M0A}, 0x4000"); e(f"s_cbranch_scc1 {lp}")
    e(f"s_lshl_b32 s{S_T0}, s{S_W8}, 11")
    e(f"s_add_u32 s{S_T0}, s{S_T0}, 0x20000")
    e(f"v_lshl_add_u32 v{t0}, v{V_LANE}, 4, s{S_T0}")
    e("s_barrier")
    e.stamp(2)
    pinit = Poll(R_DBG, "0", 1, 1, AD, AD+1)
    nored, red = e.lab("nored"), e.lab("red")
    e(f"s_cmp_lt_u32 s{S_W8}, 2"); e(f"s_cbranch_scc1 {red}")
    e("s_waitcnt vmcnt(0)")
    e(f"s_branch {nored}")
    e(red + ":")
    RB = 128
    for w in range(4):
        e(f"ds_read_b128 {vr(RB+8*w,4)}, v{t0} offset:{4096*w}")
        e(f"ds_read_b128 {vr(RB+8*w+4,4)}, v{t0} offset:{4096*w+1024}")
    e(f"v_lshrrev_b32 v{t1}, 1, v{V_LANE}")
    e(f"v_xor_b32 v{t1}, v{t1}, v{V_LANE}")
    e(f"v_and_b32 v{t1}, 4, v{t1}")
    e(f"v_mul_u32_u24 v{t1}, 3, v{t1}")
    e(f"v_xor_b32 v{t1}, v{t1}, v{V_LANE}")
    e(f"v_lshlrev_b32 v{t1}, 4, v{t1}")
    e(f"s_and_b32 s{S_T1}, s{S_B}, 1")
    e(f"s_cselect_b32 s{S_T3}, 1.0, {float_bits(math.log2(math.e) / math.sqrt(32.0)):#x}")
    e(f"s_lshl1_add_u32 s{S_T1}, s{S_T1}, s{S_W8}")
    e(f"s_lshl2_add_u32 s{S_T1}, s{S_KT}, s{S_T1}")
    e(f"s_lshl_b32 s{S_T2}, s{S_T1}, 10")
    e(f"s_add_u32 s{S_T2}, s{S_T2}, {WS_KV}")
    e(f"s_lshl_b32 s{S_KT}, s{S_T1}, 2")
    e("s_waitcnt lgkmcnt(0)")
    for step in (2, 1):
        for w in range(step):
            for i in range(8): e(f"v_add_f32 v{RB+8*w+i}, v{RB+8*w+i}, v{RB+8*(w+step)+i}")
    for i in range(8): e(f"v_mul_f32 v{RB+i}, s{S_T3}, v{RB+i}")
    for i in range(4): e(f"v_cvt_pk_bf16_f32 v{4+i}, v{RB+2*i}, v{RB+2*i+1}")
    e(f"buffer_store_dwordx4 v[4:7], v{t1}, {sr(R_WS)}, s{S_T2} offen sc1")
    pinit.issue(e)
    e("s_waitcnt vmcnt(2)")
    e(nored + ":")
    def kvflag(e):
        sk = e.lab("nkv")
        e(f"s_cmp_ge_u32 s{S_W8}, 2"); e(f"s_cbranch_scc1 {sk}")
        e.stamp(8)
        e("s_waitcnt vmcnt(0)")
        pinit.check(e)
        set_flag(e, f"s{S_KT}", VT[0])
        e.stamp(9)
        e(sk + ":")
    gemm_compute(e, 16, rd_trw(QA), rd_kc(QA+4), [QA+i for i in range(6)], {1: kvflag})
    e.stamp(3)
    e(f"s_lshl3_add_u32 s{S_T0}, s{S_A}, s{S_B}")
    e(f"s_lshl3_add_u32 s{S_T1}, s{S_T0}, s{S_W8}")
    e(f"s_lshl_b32 s{S_T1}, s{S_T1}, 11")
    e(f"s_add_u32 s{S_T1}, s{S_T1}, {WS_Q}")
    e(f"s_add_u32 s{S_T2}, s{S_T1}, {4*2048}")
    e(f"v_lshlrev_b32 v{t1}, 4, v{V_LANE}")
    e(f"s_lshl_b32 s{S_T3}, s{S_W8}, 11")
    e(f"v_add_u32 v{t2}, s{S_T3}, v{t1}")
    e(f"s_lshl2_add_u32 s{S_T0}, s{S_T0}, s{S_W8}")
    e(f"s_lshl2_add_u32 s{S_X1}, s{S_T0}, {WS_FQ}")
    def qtile(i, jj, d):
        for s in range(2):
            for hf in range(2):
                c = V_ACC + 4*(4*(2*i+s) + 2*jj + hf)
                for k in range(2): e(f"v_cvt_pk_bf16_f32 v{d+4*s+2*hf+k}, v{c+2*k}, v{c+2*k+1}")
        for s in range(2):
            for k in range(2): e(f"v_permlane16_swap_b32 v{d+4*s+k}, v{d+4*s+2+k}")
    qtile(0, 1, 128)
    for q in range(2): e(f"ds_write_b128 v{t2}, {vr(128+4*q,4)} offset:{0x8000+1024*q}")
    for jj in (1, 0):
        qtile(1, jj, 136+8*jj)
        for q in range(2): e(f"buffer_store_dwordx4 {vr(136+8*jj+4*q,4)}, v{t1}, {sr(R_WS)}, s{S_T2 if jj else S_T1} offen offset:{1024*q} sc1")
        if jj: e("s_setprio 2"); e("s_waitcnt lgkmcnt(0)"); e("s_barrier")
    qtile(0, 0, V_Q)
    S_A2, S_B2 = S_TC, S_CB
    e(f"s_and_b32 s{S_T1}, s{S_W8}, 1"); e(f"s_lshl1_add_u32 s{S_T1}, s{S_B2}, s{S_T1}"); e(f"s_lshl_b32 s{S_T1}, s{S_T1}, 7")
    e(f"v_and_b32 v{t0}, 15, v{V_LANE}")
    e(f"v_lshl_add_u32 v{t0}, v{t0}, 1, s{S_T1}")
    DS, DG, XR = 28, 160, 128
    for i in range(4): e(f"global_load_ushort v{DS+i}, v{t0}, s[{P_DSK}:{P_DSK+1}] offset:{32*i}")
    def qflag(e):
        e("s_waitcnt vmcnt(4)")
        set_flag(e, f"s{S_X1}", VT[0])
    e("s_setprio 0")
    e.stamp(4)
    def ysetup(e):
        e(f"s_and_b32 s{S_T1}, s{S_W8}, 1"); e(f"s_lshr_b32 s{S_T2}, s{S_W8}, 1")
        e(f"s_lshl_b32 s{S_T0}, s{S_T1}, 13")
        e(f"s_lshl1_add_u32 s{S_T3}, s{S_T1}, s{S_T2}"); e(f"s_lshl_b32 s{S_T3}, s{S_T3}, 13")
        kc_read(e, [(AD+4, S_T3), (AD, S_T0)])
        for s in range(2):
            for j in range(4): e(f"ds_read_b128 {vr(XR+16*s+4*j,4)}, v{AD+4+s} offset:{2048*j}")
        e(f"v_bfe_u32 v{t0}, v{V_LANE}, 1, 1")
        e(f"v_mul_u32_u24 v{t0}, {1024+64}, v{t0}")
        e(f"v_lshrrev_b32 v{t1}, 5, v{V_LANE}")
        e(f"v_lshl_add_u32 v{t0}, v{t1}, 12, v{t0}")
        e(f"v_bfe_u32 v{t1}, v{V_LANE}, 4, 1")
        e(f"v_lshl_add_u32 v{t0}, v{t1}, 7, v{t0}")
        e(f"v_bfe_u32 v{t1}, v{V_LANE}, 2, 2")
        e(f"v_lshl_add_u32 v{t0}, v{t1}, 4, v{t0}")
        e(f"v_and_b32 v{t1}, 1, v{V_LANE}")
        e(f"v_lshl_add_u32 v{t0}, v{t1}, 3, v{t0}")
        e(f"s_lshl_b32 s{S_T2}, s{S_T2}, 9"); e(f"s_add_u32 s{S_T2}, s{S_T2}, 16384")
        e(f"v_add_u32 v{AD+2}, s{S_T2}, v{t0}")
        e(f"v_xor_b32 v{AD+3}, 64, v{AD+2}")
        e(f"v_lshlrev_b32 v{t1}, 4, v{t1}")
        for i in range(4): e(f"v_lshlrev_b32 v{DS+i}, v{t1}, v{DS+i}")
        e(f"v_lshrrev_b32 v{t0}, 4, v{V_LANE}")
        e(f"v_bfe_u32 v{t1}, v{V_LANE}, 1, 3")
        e(f"v_lshlrev_b32 v{t0}, 2, v{t0}")
        e(f"v_sub_u32 v{t1}, v{t1}, v{t0}")
        for r in range(4):
            e(f"v_cmp_eq_u32 vcc, {r}, v{t1}")
            e(f"v_cmp_eq_u32 s[100:101], {r - 8}, v{t1}")
            e("s_nop 0")
            e(f"v_cndmask_b32 v{DG+r}, 0, v{DS}, vcc")
            e(f"v_cndmask_b32 v{DG+8+r}, 0, v{DS+2}, vcc")
            e(f"v_cndmask_b32 v{DG+4+r}, 0, v{DS+1}, s[100:101]")
            e(f"v_cndmask_b32 v{DG+12+r}, 0, v{DS+3}, s[100:101]")
        e("s_waitcnt lgkmcnt(0)")
        e("s_nop 0")
        for i in range(4):
            for j in range(4): e(m16(V_ACC+4*(4*i+j), DG+4*i, XR+16*(i>>1)+4*j, "0"))
    attention(e, "lo", hm={0: qflag}, hb={2: both(drain, urgent(ysetup))}, vm=False)
    e.stamp(5)
    att_finish(e, 2)
    e.stamp(6)
    rdH = lambda f, t, s, off: [f"ds_read_b64_tr_b16 {vr(f+2*q,2)}, v{AD+2+q} offset:{off+8192*s+2048*(t&1)+256*(t>>1)}" for q in range(2)]
    gemm_compute(e, 32, rd_kc(AD), rdH, [AD, AD+1, AD+2, AD+3], {0: o_flag(2, 0)})
    e.stamp(7)
    store_tile(e, S_A2, S_B2, 0, cfg.sc1out & 2)
    e(f"s_branch {lqend}")
    e.flush()
    e(lload + ":")
    e(f"s_lshl_b32 s{S_M0A}, s{S_LW}, 12")
    e(f"s_add_u32 s{S_M0B}, s{S_M0A}, 16384")
    e.stamp(2)
    e(f"s_mov_b32 s{S_SLOT}, 0x10000")
    e(f"s_add_u32 s{S_KI}, s{S_ROT}, 2"); e(f"s_and_b32 s{S_KI}, s{S_KI}, 15")
    def iss(e):
        e(f"s_xor_b32 s{S_K1}, s{S_KI}, s8")
        e(f"s_lshl_b32 s{S_K0}, s{S_K1}, 17"); e(f"s_lshl_b32 s{S_K1}, s{S_K1}, 7")
        dma4(e, [QA, QA+1, QA+2, QA+3], R_C, S_K0, S_M0A)
        dma4(e, [QA+4, QA+5, QA+6, QA+7], R_A, S_K1, S_M0B)
        e(f"s_add_u32 s{S_KI}, s{S_KI}, 1"); e(f"s_and_b32 s{S_KI}, s{S_KI}, 15")
        slot_adv(e)
    pkv = Poll(R_WS, "0", 64, 4, AD+2, AD+4)
    def tail(e):
        e("s_waitcnt vmcnt(16)")
        pkv.check(e)
        kv_issue(e)
        return 8
    gemm_loader(e, 14, iss, {8: pinit.issue, 11: both(pinit.check, pkv.issue)}, tail)
    lin_dma(e, AD)
    e(f"s_lshl2_add_u32 s{S_T1}, s{S_B2}, s{S_LW}"); e(f"s_lshl_b32 s{S_T1}, s{S_T1}, 5")
    kc_dma(e, AD+4, [0, 8, 16, 24], S_T1)
    e(f"s_lshl2_add_u32 s{S_T1}, s{S_A2}, s{S_LW}"); e(f"s_lshl_b32 s{S_T1}, s{S_T1}, 5")
    kc_dma(e, AD+8, [0, 8, 16, 24], S_T1)
    e.srd(R_A, P_XA, 0x400000); e.srd(R_B, P_CRE, 0x200000); e.srd(R_C, P_CIM, 0x200000)
    e(f"s_lshr_b32 s{S_X1}, s{S_A2}, 2")
    e(f"s_lshl_b32 s{S_X1}, s{S_X1}, 7"); e(f"s_add_u32 s{S_X1}, s{S_X1}, {WS_FH}")
    e(f"s_lshl_b32 s{S_T3}, s{S_LW}, 11")
    e(f"v_lshl_add_u32 v{t2}, v{V_LANE}, 4, s{S_T3}")
    e("s_barrier")
    e("s_waitcnt vmcnt(0)"); e("s_barrier")
    for q in range(2): e(f"ds_read_b128 {vr(V_Q+4*q,4)}, v{t2} offset:{0x8000+1024*q}")
    e.stamp(4)
    def touch_c(srd, r):
        def f(e):
            if r is None:
                e(f"s_lshr_b32 s{S_T1}, s{S_A2}, 2"); e(f"s_lshl_b32 s{S_T1}, s{S_T1}, 19")
                touch_round(e, srd, 0, S_T1)
            elif cfg.mixed:
                e(f"s_lshr_b32 s{S_T1}, s{S_B2}, 2"); e(f"s_lshl_b32 s{S_T1}, s{S_T1}, 20")
                touch_round(e, srd, r << 19, S_T1)
            else:
                touch_round(e, srd, r << 19)
        return f
    def xload(e):
        e(f"s_lshl_b32 s{S_K0}, s{S_B2}, 8"); e(f"s_add_u32 s{S_K1}, s{S_K0}, 128")
        dma4(e, [AD+8, AD+9, AD+10, AD+11], R_A, S_K0, S_M0A)
        dma4(e, [AD+8, AD+9, AD+10, AD+11], R_A, S_K1, S_M0B)
        e(f"s_lshl_b32 s7, s{S_A2}, 19"); e(f"s_add_u32 s7, s7, {WS_H}")
        if cfg.rot & 8:
            e(f"s_lshl_b32 s{S_K1}, s{S_B2}, {9 if cfg.mixed else 8}"); e(f"s_and_b32 s{S_K1}, s{S_K1}, 2047")
        else: e(f"s_mov_b32 s{S_K1}, 0")
    ph = Poll(R_WS, f"s{S_X1}", 32, 1, AD+1, AD+2)
    def htouch(e):
        e(f"s_lshr_b32 s{S_T2}, s{S_A2}, 2")
        e(f"s_lshl2_add_u32 s{S_T0}, s{S_CI}, s{S_LW}")
        for r in range(2 if cfg.mixed else 1):
            if r: e(f"s_add_u32 s{S_T0}, s{S_T0}, 64")
            e(f"s_lshr_b32 s{S_T1}, s{S_T0}, 5"); e(f"s_lshl2_add_u32 s{S_T1}, s{S_T2}, s{S_T1}"); e(f"s_lshl_b32 s{S_T1}, s{S_T1}, 6")
            e(f"s_and_b32 s{S_T3}, s{S_T0}, 31"); e(f"s_add_u32 s{S_T1}, s{S_T1}, s{S_T3}")
            e(f"s_lshl_b32 s{S_T1}, s{S_T1}, 13"); e(f"s_add_u32 s{S_T1}, s{S_T1}, {WS_H}")
            touch(e, R_WS, S_T1, "sc1")
    def issy(e):
        e(f"s_lshl_b32 s{S_K0}, s{S_K1}, 7"); e(f"s_add_u32 s{S_K0}, s{S_K0}, s7")
        dma4(e, [AD+4, AD+5, AD+6, AD+7], R_B, S_K1, S_M0A)
        dma4(e, [AD]*4, R_WS, S_K0, S_M0B, "sc1")
        e(f"s_add_u32 s{S_K1}, s{S_K1}, 128"); e(f"s_and_b32 s{S_K1}, s{S_K1}, 2047")
        slot_adv(e)
    def ypre(e):
        sk = e.lab("nopre")
        e(f"s_waitcnt vmcnt(0)")
        ph.test(e)
        e(f"s_cbranch_scc1 {sk}")
        lp = e.lab("ypre")
        e(lp + ":"); issy(e)
        e(f"s_cmp_lg_u32 s{S_SLOT}, 0x10000"); e(f"s_cbranch_scc1 {lp}")
        if cfg.pf == 1 and not cfg.rot & 8: htouch(e)
        e(sk + ":")
    hb = {0: xload, 6: ph.issue}
    if cfg.pf and cfg.mixed:
        hb.update({1: touch_c(R_C, 0), 2: touch_c(R_C, 1), 4: touch_c(R_B, 0), 5: touch_c(R_B, 1)})
    elif cfg.pf == 1:
        hb.update({1: touch_c(R_C, None), 2: touch_c(R_B, 0), 3: touch_c(R_B, 1), 4: touch_c(R_B, 2), 5: touch_c(R_B, 3)})
    elif cfg.pf == 2:
        hb.update({1: touch_c(R_C, None), 2: touch_c(R_B, None)})
    attention(e, "hi", hb=hb, he={6: ypre})
    e.stamp(5)
    att_finish(e, 2)
    e.stamp(6)
    late(e, ph, issy)
    def toim(e):
        e(f"s_mov_b32 s{R_B}, s{P_CIM}"); e(f"s_mov_b32 s{R_B+1}, s{P_CIM+1}")
        e("s_add_u32 s7, s7, 0x40000")
        if not cfg.rot & 16: e(f"s_mov_b32 s{S_K1}, 0")
    gemm_loader(e, 30, issy, {0: o_flag(2, 8), 13: toim})
    e("s_barrier")
    e(f"s_branch {lqend}")
    e.flush()
    e(lqend + ":")


def P2(r): return f"v[{r}:{r+1}]"


def pk_sq(e, dr, di, ar, ai, t):
    e(f"v_pk_mul_f32 {P2(t)}, {P2(ai)}, {P2(ai)}")
    e(f"v_pk_mul_f32 {P2(di)}, {P2(ar)}, {P2(ai)}")
    e(f"v_pk_fma_f32 {P2(dr)}, {P2(ar)}, {P2(ar)}, {P2(t)} neg_lo:[0,0,1] neg_hi:[0,0,1]")
    e(f"v_pk_add_f32 {P2(di)}, {P2(di)}, {P2(di)}")


def pk_cfma(e, hr, hi, lr, li, ur, ui, ta, tb, c=None):
    o = "" if c is None else f" op_sel:[{c},0,0] op_sel_hi:[{c},1,1]"
    e(f"v_pk_fma_f32 {P2(ta)}, {P2(li)}, {P2(hi)}, {P2(ur)}{o} neg_lo:[1,0,0] neg_hi:[1,0,0]")
    e(f"v_pk_fma_f32 {P2(tb)}, {P2(li)}, {P2(hr)}, {P2(ui)}{o}")
    e(f"v_pk_fma_f32 {P2(hr)}, {P2(lr)}, {P2(hr)}, {P2(ta)}{o}")
    e(f"v_pk_fma_f32 {P2(hi)}, {P2(lr)}, {P2(hi)}, {P2(tb)}{o}")


def cfma_to(e, dr, di, lr, li, hr, hi, ur, ui):
    e(f"v_fma_f32 v{dr}, -v{li}, v{hi}, v{ur}")
    e(f"v_fma_f32 v{di}, v{li}, v{hr}, v{ui}")
    e(f"v_fmac_f32 v{dr}, v{lr}, v{hr}")
    e(f"v_fmac_f32 v{di}, v{lr}, v{hi}")


def group1(e):
    cfg = e.cfg
    AD = V_AD
    t0, t1, t2, t3 = VT[0], VT[1], VT[2], VT[3]
    STG = 49152
    L_LAM, L_SEG, L_CAR = 0x24000, 0, 0x1000
    lload, lend = e.lab("g1hi"), e.lab("g1end")
    e(f"s_lshl3_add_u32 s{S_T0}, s{S_A}, s{S_B}")
    e(f"s_lshl3_add_u32 s{S_X1}, s{S_T0}, s{S_W8}")
    e(f"s_lshl_b32 s{S_X1}, s{S_X1}, 11"); e(f"s_add_u32 s{S_X1}, s{S_X1}, {WS_Q}")
    def qload(e):
        e(f"v_lshlrev_b32 v{t0}, 4, v{V_LANE}")
        for q in range(2): e(f"buffer_load_dwordx4 {vr(V_Q+4*q,4)}, v{t0}, {sr(R_WS)}, s{S_X1} offen offset:{1024*q} sc1")
    e(f"s_cmp_ge_u32 s{S_W8}, 4"); e(f"s_cbranch_scc1 {lload}")
    LR, LI, GR, GI, QR, QI, ER, EI = 12, 14, 16, 18, 20, 22, 24, 26
    RA, RB = 8, 10
    UA, AF, BF = 128, 32, 64
    e(f"s_lshr_b32 s{S_T2}, s{S_W8}, 1")
    e(f"s_lshl1_add_u32 s{S_T1}, s{S_CB}, s{S_T2}"); e(f"s_lshl_b32 s{S_T1}, s{S_T1}, 6")
    e(f"v_and_b32 v28, 15, v{V_LANE}")
    e(f"v_lshl_add_u32 v{t0}, v28, 1, s{S_T1}")
    for c in range(2):
        e(f"global_load_ushort v{QR+c}, v{t0}, s[{P_LRE}:{P_LRE+1}] offset:{32*c}")
        e(f"global_load_ushort v{QI+c}, v{t0}, s[{P_LIM}:{P_LIM+1}] offset:{32*c}")
        e(f"global_load_ushort v{GR+c}, v{t0}, s[{P_LDT}:{P_LDT+1}] offset:{32*c}")
    for i in range(4): e(f"v_mov_b32 v{AF+i}, 0")
    noinit = e.lab("noinit")
    e(f"s_or_b32 s{S_T0}, s{S_TC}, s{S_CB}"); e(f"s_or_b32 s{S_T0}, s{S_T0}, s{S_W8}"); e(f"s_cbranch_scc1 {noinit}")
    e(f"v_lshlrev_b32 v{t0}, 4, v{V_LANE}")
    for i in range(WS_FEND // 1024):
        e(f"s_mov_b32 s{S_T0}, {1024*i}")
        e(f"buffer_store_dwordx4 {vr(AF,4)}, v{t0}, {sr(R_WS)}, s{S_T0} offen sc1")
    e(f"v_mov_b32 v{t0}, 1")
    e("s_waitcnt vmcnt(0)")
    e("s_mov_b64 exec, 1")
    e(f"buffer_store_dword v{t0}, off, {sr(R_DBG)}, 0 sc1")
    e("s_mov_b64 exec, -1")
    e(noinit + ":")
    e(f"s_lshl_b32 s{S_T0}, s{S_T2}, 8")
    e(f"v_lshl_add_u32 v28, v28, 4, s{S_T0}")
    e(f"s_and_b32 s{S_T1}, s{S_W8}, 1"); e(f"s_lshl_b32 s{S_T1}, s{S_T1}, 14")
    e(f"s_lshl_b32 s{S_T2}, s{S_T2}, 13"); e(f"s_add_u32 s{S_T2}, s{S_T2}, 32768")
    kc_read(e, [(RA, S_T1), (RB, S_T2)])
    for i in range(8): e(zero16(UA+16*i, AF))
    e("s_waitcnt vmcnt(1)" if False else "s_waitcnt vmcnt(0)")
    log2e = float_bits(math.log2(math.e))
    for c in range(2):
        AR, AI, lr, li, gr, gi = QR+c, QI+c, LR+c, LI+c, GR+c, GI+c
        e(f"v_lshlrev_b32 v{gr}, 16, v{gr}"); e(f"v_lshlrev_b32 v{AR}, 16, v{AR}"); e(f"v_lshlrev_b32 v{AI}, 16, v{AI}")
        e(f"v_mul_f32 v{gr}, {log2e:#x}, v{gr}")
        e(f"v_exp_f32 v{gr}, v{gr}")
        e("s_nop 0")
        e(f"v_cvt_pk_bf16_f32 v{gr}, v{gr}, v{gr}")
        e(f"v_lshlrev_b32 v{gr}, 16, v{gr}")
        e(f"v_mul_f32 v{t0}, v{gr}, v{AR}")
        e(f"v_mul_f32 v{t1}, v{gr}, v{AI}")
        e(f"v_mul_f32 v{t0}, {log2e:#x}, v{t0}")
        e(f"v_mul_f32 v{t1}, 0.15915494, v{t1}")
        e(f"v_exp_f32 v{t0}, v{t0}")
        e(f"v_rndne_f32 v{t2}, v{t1}")
        e(f"v_sub_f32 v{t1}, v{t1}, v{t2}")
        e(f"v_cos_f32 v{t2}, v{t1}")
        e(f"v_sin_f32 v{t3}, v{t1}")
        e("s_nop 0")
        e(f"v_mul_f32 v{lr}, v{t0}, v{t2}")
        e(f"v_mul_f32 v{li}, v{t0}, v{t3}")
        e(f"v_max_f32 v{t0}, abs(v{AR}), abs(v{AI})")
        e(f"v_frexp_exp_i32_f32 v{t0}, v{t0}")
        e(f"v_sub_u32 v{t0}, 0, v{t0}")
        e(f"v_ldexp_f32 v{AR}, v{AR}, v{t0}")
        e(f"v_ldexp_f32 v{AI}, v{AI}, v{t0}")
        e(f"v_mul_f32 v{t1}, v{AR}, v{AR}")
        e(f"v_fmac_f32 v{t1}, v{AI}, v{AI}")
        e(f"v_rcp_f32 v{t1}, v{t1}")
        e(f"v_add_u32 v{t0}, 1, v{t0}")
        e(f"v_add_f32 v{t2}, -1.0, v{lr}")
        e(f"v_mul_f32 v{gr}, v{t2}, v{AR}")
        e(f"v_fmac_f32 v{gr}, v{li}, v{AI}")
        e(f"v_mul_f32 v{gi}, v{t2}, v{AI}")
        e(f"v_fma_f32 v{gi}, v{li}, v{AR}, -v{gi}")
        e(f"v_mul_f32 v{gr}, v{gr}, v{t1}")
        e(f"v_mul_f32 v{gi}, v{gi}, v{t1}")
        e(f"v_ldexp_f32 v{gr}, v{gr}, v{t0}")
        e(f"v_ldexp_f32 v{gi}, v{gi}, v{t0}")
    pk_sq(e, QR, QI, LR, LI, 2)
    for i in range(3): pk_sq(e, QR, QI, QR, QI, 2)
    pk_sq(e, ER, EI, QR, QI, 2)
    e(f"v_add_u32 v{t0}, {L_LAM}, v28")
    e(f"ds_write_b128 v{t0}, {vr(ER,4)}")
    e(f"v_lshrrev_b32 v{t1}, 4, v{V_LANE}")
    e(f"s_and_b32 s{S_T1}, s{S_W8}, 1"); e(f"s_lshl_b32 s{S_T1}, s{S_T1}, 2")
    e(f"v_add_u32 v{t1}, s{S_T1}, v{t1}")
    e(f"v_lshl_add_u32 v28, v{t1}, 9, v28")
    rdA = lambda i: [f"ds_read_b128 {vr(AF+8*(i&3)+4*s,4)}, v{RA+s} offset:{2048*(i&7)}" for s in range(2)]
    rdB = lambda b: [f"ds_read_b128 {vr(BF+32*b+8*j+4*s,4)}, v{RB+s} offset:{2048*j}" for j in range(4) for s in range(2)]
    e(f"s_mov_b32 s{S_T3}, 0"); e(f"s_mov_b32 s{S_CNT}, 0")
    e("s_waitcnt lgkmcnt(0)")
    e("s_barrier")
    e.stamp(1)
    e(rdA(0)); e(rdB(0)); e(rdA(1))
    lp = e.lab("a1")
    e(".p2align 3")
    e(lp + ":")
    for b in range(2):
        nxt = rdA(8) + rdB(1 - b) + rdA(9)
        for i in range(8):
            js = range(4) if i % 2 == 0 else range(3, -1, -1)
            m = [m16(UA + 4*(4*i + j), AF + 8*(i & 3) + 4*s, BF + 32*b + 8*j + 4*s) for j in js for s in range(2)]
            it = rdA(i + 2) if i < 6 else []
            if i == 4: it += [f"s_mov_b32 s{S_T2}, {STG}", f"s_cmp_eq_u32 s{S_T3}, {2*STG}", f"s_cmov_b32 s{S_T2}, {(-2*STG) & 0xffffffff:#x}", f"s_add_u32 s{S_T3}, s{S_T3}, s{S_T2}"]
            if i == 5: it += [f"v_add_u32 v{r}, s{S_T2}, v{r}" for r in (RA, RA+1, RB, RB+1)]
            if i == 6: it = ["s_barrier"] + nxt[:7]
            if i == 7:
                it = nxt[7:]
                if b: it += [f"s_add_u32 s{S_CNT}, s{S_CNT}, 1", f"s_cmp_lg_u32 s{S_CNT}, 8"]
            if i < 7: e(f"s_waitcnt lgkmcnt({2 if i < 6 else 0})")
            for k, x in enumerate(m):
                e(x)
                if k < len(it): e(it[k])
    e(f"s_cbranch_scc1 {lp}")
    e.stamp(2)
    e("s_waitcnt lgkmcnt(0)")
    qload(e)
    att_setup(e, "lo")
    U = lambda k, c, pp: UA + 4*(4*(k >> 1) + 2*pp + c) + 2*(k & 1)
    HR, HI, TA, TB2 = 2, 4, 6, 30
    for c in range(2):
        e(f"v_pk_mov_b32 {P2(HR)}, {P2(U(0,c,0))}, {P2(U(0,c,0))} op_sel:[0,1]")
        e(f"v_pk_mov_b32 {P2(HI)}, {P2(U(0,c,1))}, {P2(U(0,c,1))} op_sel:[0,1]")
        for k in range(1, 16): pk_cfma(e, HR, HI, LR, LI, U(k,c,0), U(k,c,1), TA, TB2, c)
        e(f"v_mov_b32 v{ER+c}, v{HR}"); e(f"v_mov_b32 v{EI+c}, v{HI}")
        cfma_to(e, 120+c, 122+c, QR+c, QI+c, HR, HI, HR+1, HI+1)
    e(f"ds_write_b128 v28, v[120:123] offset:{L_SEG}")
    e("s_waitcnt vmcnt(0) lgkmcnt(0)"); e("s_barrier")
    e.stamp(3)
    def hst(n):
        c, pp, ch, hf = n >> 3, (n >> 2) & 1, (n >> 1) & 1, n & 1
        d = UA + 4*(4*(4*hf + 2*ch) + 2*pp + c)
        return f"buffer_store_dwordx4 {vr(d,4)}, v{AD+2*c+hf}, {sr(R_WS)}, s{S_K1 if pp else S_K0} offen offset:{1024*(2*ch+hf)} sc1"
    nearly = cfg.hearly
    def fixup(e):
        e.stamp(8)
        if cfg.fixprio: e("s_setprio 2")
        e(f"s_lshl_b32 s{S_T0}, s{S_W8}, 10")
        e(f"v_lshlrev_b32 v{AD}, 4, v{V_LANE}")
        e(f"v_add_u32 v{t0}, s{S_T0}, v{AD}")
        e(f"ds_read_b128 v[120:123], v{t0} offset:{L_CAR}")
        e(f"v_xor_b32 v{AD+1}, 64, v{AD}")
        e(f"v_add_u32 v{AD+2}, 0x1000, v{AD}"); e(f"v_add_u32 v{AD+3}, 0x1000, v{AD+1}")
        e(f"s_and_b32 s{S_T0}, s{S_W8}, 1"); e(f"s_lshl1_add_u32 s{S_T0}, s{S_TC}, s{S_T0}")
        e(f"s_lshl_b32 s{S_T0}, s{S_T0}, 5"); e(f"s_add_u32 s{S_T0}, s{S_T0}, s{S_CB}")
        e(f"s_and_b32 s{S_T1}, s{S_W8}, 2"); e(f"s_lshl2_add_u32 s{S_T0}, s{S_T0}, s{S_T1}")
        e(f"s_lshl_b32 s{S_T0}, s{S_T0}, 12"); e(f"s_add_u32 s{S_K0}, s{S_T0}, {WS_H}")
        e(f"s_add_u32 s{S_K1}, s{S_K0}, 0x40000")
        e("s_waitcnt lgkmcnt(0)")
        for c in range(2):
            o2 = f" op_sel:[{c},0] op_sel_hi:[{c},1]"; o3 = f" op_sel:[{c},0,0] op_sel_hi:[{c},1,1]"
            e(f"v_mov_b32 v{HR}, v{120+c}"); e(f"v_mov_b32 v{HI}, v{122+c}")
            cfma_to(e, HR+1, HI+1, QR+c, QI+c, HR, HI, ER+c, EI+c)
            for k in range(16):
                ur, ui = U(k,c,0), U(k,c,1)
                if c == 1 and nearly and k % (16 // nearly) == 0: e(hst(k // (16 // nearly)))
                pk_cfma(e, HR, HI, LR, LI, ur, ui, TA, TB2, c)
                e(f"v_pk_mul_f32 {P2(ui)}, {P2(GI)}, {P2(HR)}{o2}")
                e(f"v_pk_mul_f32 {P2(ur)}, {P2(GI)}, {P2(HI)}{o2}")
                e(f"v_pk_fma_f32 {P2(ui)}, {P2(GR)}, {P2(HI)}, {P2(ui)}{o3} neg_lo:[1,0,1] neg_hi:[1,0,1]")
                e(f"v_pk_fma_f32 {P2(ur)}, {P2(GR)}, {P2(HR)}, {P2(ur)}{o3} neg_lo:[0,0,1] neg_hi:[0,0,1]")
            for pp in range(2):
                for hf in range(2):
                    T = [UA + 4*(4*(4*hf + q) + 2*pp + c) for q in range(4)]
                    for d, a in ((T[0], T[0]), (T[0]+2, T[2]), (T[2], T[0]+1), (T[0]+1, T[1]), (T[0]+3, T[3]), (T[2]+2, T[2]+1), (T[2]+1, T[1]+1), (T[2]+3, T[3]+1)):
                        e(f"v_cvt_pk_bf16_f32 v{d}, v{a}, v{a+2}")
        if cfg.fixprio == 2: e("s_setprio 0")
        e.stamp(9)
    fx = cfg.fix
    rest = list(range(nearly, 16))
    ext = [[hst(n) for n in rest[len(rest)*t//8:len(rest)*(t+1)//8]] for t in range(8)]
    if cfg.fixprio == 1: ext[7] = ext[7] + ["s_setprio 0"]
    paced = (fx + 1, ext)
    hfl = 2
    def osetup(e):
        e(f"s_and_b32 s{S_T1}, s{S_W8}, 1"); e(f"s_lshl_b32 s{S_T1}, s{S_T1}, 2")
        for i in range(4): e(f"v_mov_b32 v{28+i}, 0")
        trw_read(e, AD, S_T1, [0, 1, 2, 3])
        e(f"s_lshr_b32 s{S_T1}, s{S_W8}, 1"); e(f"s_lshl_b32 s{S_T1}, s{S_T1}, 13"); e(f"s_add_u32 s{S_T1}, s{S_T1}, 16384")
        e(f"v_lshl_add_u32 v{AD+4}, v{V_LANE}, 4, s{S_T1}")
        for i in range(4): e(zero16(V_ACC+16*i, 28))
    e.stamp(4)
    attention(e, "lo", hb={fx: fixup, 5: urgent(osetup)}, paced=paced)
    e.stamp(5)
    att_finish(e, 1)
    e.stamp(6)
    rdO = lambda f, t, s, off: [f"ds_read_b128 {vr(f,4)}, v{AD+4} offset:{off+2048*t+1024*s}"]
    gemm_compute(e, 16, rd_trw(AD), rdO, [AD, AD+1, AD+2, AD+3, AD+4], {0: o_flag(1, 0)})
    e.stamp(7)
    store_tile(e, S_A, S_B, 1024, cfg.sc1out & 1)
    e(f"s_branch {lend}")
    e.flush()
    e(lload + ":")
    e.srd(R_A, P_XA, 0x400000)
    e(f"s_bitcmp1_b32 s{S_W8}, 0")
    e(f"s_cselect_b64 s[{R_B}:{R_B+1}], s[{P_BIM}:{P_BIM+1}], s[{P_BRE}:{P_BRE+1}]")
    e(f"s_mov_b32 s{R_B+2}, 0x200000"); e(f"s_mov_b32 s{R_B+3}, 0x20000")
    V_PF = 34
    if cfg.pf1 & 2:
        e(f"s_lshl4_add_u32 s{S_T0}, s{S_TC}, s{S_CB}"); e(f"s_lshl2_add_u32 s{S_T0}, s{S_T0}, s{S_LW}")
        e(f"s_cmp_lt_u32 s{S_T0}, 0x180")
        e(f"s_cselect_b64 s[{R_C}:{R_C+1}], s[{P_BRE}:{P_BRE+1}], s[{P_BIM}:{P_BIM+1}]")
        e(f"s_cmp_lt_u32 s{S_T0}, 0x100")
        e(f"s_cselect_b64 s[{R_C}:{R_C+1}], s[{P_XA}:{P_XA+1}], s[{R_C}:{R_C+1}]")
        e(f"s_cselect_b32 s{R_C+2}, 0x400000, s{R_B+2}"); e(f"s_mov_b32 s{R_C+3}, 0x20000")
        e(f"s_movk_i32 s{S_T1}, 0x7f"); e(f"s_cmov_b32 s{S_T1}, 0xff")
        e(f"s_and_b32 s{S_T0}, s{S_T0}, s{S_T1}"); e(f"s_lshl_b32 s{S_T0}, s{S_T0}, 14")
        e(f"v_bfe_u32 v{t0}, v{V_LANE}, 2, 3"); e(f"v_and_b32 v{t1}, 3, v{V_LANE}")
        e(f"v_lshl_add_u32 v{t0}, v{t0}, 4, v{t1}")
        e(f"v_lshl_add_u32 v{V_PF}, v{t0}, 7, s{S_T0}")
    pfk = lambda kb: (lambda e: e([f"buffer_load_dword v7, v{V_PF}, {sr(R_C)}, 0 offen offset:{512*kb}"] if cfg.pf1 & 2 else []))
    if cfg.pf1 & 4: pfk(0)(e)
    e(f"s_lshr_b32 s{S_T2}, s{S_LW}, 1"); e(f"s_lshl1_add_u32 s{S_T1}, s{S_TC}, s{S_T2}")
    e(f"s_and_b32 s{S_T3}, s{S_LW}, 1"); e(f"s_lshl4_add_u32 s{S_T1}, s{S_T1}, s{S_T3}"); e(f"s_lshl_b32 s{S_T1}, s{S_T1}, 3")
    kc_dma(e, AD, [0, 64, 2, 66], S_T1, perm=True)
    e(f"s_lshl1_add_u32 s{S_T1}, s{S_CB}, s{S_T2}"); e(f"s_lshl_b32 s{S_T1}, s{S_T1}, 5")
    kc_dma(e, AD+4, [0, 8, 16, 24], S_T1)
    e(f"s_lshl_b32 s{S_M0A}, s{S_LW}, 13")
    e(f"s_lshl_b32 s{S_M0B}, s{S_LW}, 12"); e(f"s_add_u32 s{S_M0B}, s{S_M0B}, 32768")
    e(f"s_add_u32 s8, s{S_M0A}, 4096")
    e(f"s_mov_b32 s{S_KI}, 0"); e(f"s_mov_b32 s{S_SLOT}, 0")
    def issu(e):
        if cfg.rot & 4:
            e(f"s_add_u32 s{S_T0}, s{S_KI}, s{S_ROT}"); e(f"s_and_b32 s{S_T0}, s{S_T0}, 3"); e(f"s_and_b32 s{S_K0}, s{S_KI}, 12")
            e(f"s_or_b32 s{S_K0}, s{S_K0}, s{S_T0}"); e(f"s_lshl_b32 s{S_K0}, s{S_K0}, 7")
        else: e(f"s_lshl_b32 s{S_K0}, s{S_KI}, 7")
        e(f"s_add_u32 s{S_K1}, s{S_K0}, 0x2000")
        dma4(e, [AD+4, AD+5, AD+6, AD+7], R_B, S_K0, S_M0B)
        dma4(e, [AD, AD+1, AD+2, AD+3], R_A, S_K0, S_M0A)
        dma4(e, [AD, AD+1, AD+2, AD+3], R_A, S_K1, 8)
        e(f"s_add_u32 s{S_KI}, s{S_KI}, 1")
        e(f"s_add_u32 s{S_SLOT}, s{S_SLOT}, {STG}"); e(f"s_cmp_eq_u32 s{S_SLOT}, {3*STG}"); e(f"s_cselect_b32 s{S_SLOT}, 0, s{S_SLOT}")
    issu(e)
    if not cfg.pf1 & 4: pfk(0)(e)
    issu(e)
    att_setup(e, "hi")
    V_EO, L32R, L32I, L256R, L256I, TB = 16, 20, 22, 24, 26, 128
    e(f"s_lshr_b32 s{S_T2}, s{S_LW}, 1")
    e(f"s_lshl_b32 s{S_T0}, s{S_T2}, 8")
    e(f"v_and_b32 v{V_EO}, 15, v{V_LANE}")
    e(f"v_lshl_add_u32 v{V_EO}, v{V_EO}, 4, s{S_T0}")
    e(f"s_lshl1_add_u32 s9, s{S_CB}, s{S_T2}"); e(f"s_lshl_b32 s9, s9, 5"); e(f"s_add_u32 s9, s9, {WS_FE}")
    e(f"s_lshl3_add_u32 s7, s{S_A}, s{S_B}"); e(f"s_lshl_b32 s7, s7, 4"); e(f"s_add_u32 s7, s7, {WS_FQ}")
    pinit = Poll(R_DBG, "0", 1, 1, 17, 18)
    pkv = Poll(R_WS, "0", 64, 4, 17, 28)
    pq = Poll(R_WS, "s7", 4, 1, 18, 19)
    def lam(e):
        e(f"v_add_u32 v{t0}, {L_LAM}, v{V_EO}")
        e(f"ds_read_b128 {vr(L32R,4)}, v{t0}")
    def tail(e):
        pkv.issue(e)
        return 1
    gemm_loader(e, 14, issu, {0: pfk(1), 2: lam, 4: pfk(2), 8: pfk(3), 9: pinit.issue, 12: pinit.check}, tail, per=12, split=0)
    pq.issue(e)
    e("s_waitcnt vmcnt(1) lgkmcnt(0)")
    pkv.check(e)
    kv_issue(e)
    e.srd(R_B, P_WO, 0x200000)
    lin_dma(e, AD)
    e(f"s_lshl_b32 s{S_T1}, s{S_B}, 8")
    trw_dma(e, AD+4, S_T1)
    e(f"s_lshl_b32 s{S_M0A}, s{S_LW}, 12")
    e(f"s_add_u32 s{S_M0B}, s{S_M0A}, 16384")
    e(f"s_mov_b32 s{S_SLOT}, 0")
    e(f"s_lshl_b32 s{S_KI}, s{S_B}, 1")
    e("s_waitcnt vmcnt(8)")
    pq.check(e)
    e("s_barrier")
    e.stamp(2)
    qload(e)
    e(f"s_lshl_b32 s{S_X1}, s{S_A}, 18"); e(f"s_add_u32 s{S_X1}, s{S_X1}, {WS_O}")
    e(f"s_lshl_b32 s8, s{S_CB}, 9"); e(f"s_add_u32 s8, s8, {WS_E}")
    e(f"s_lshl_b32 s7, s{S_A}, 9"); e(f"s_add_u32 s7, s7, {WS_FO}")
    pk_sq(e, L256R, L256I, L32R, L32I, 2)
    for i in range(2): pk_sq(e, L256R, L256I, L256R, L256I, 2)
    e("s_waitcnt vmcnt(0)"); e("s_barrier")
    if cfg.attprio: e("s_setprio 1")
    for s in range(8): e(f"ds_read_b128 {vr(TB+4*s,4)}, v{V_EO} offset:{L_SEG+512*s}")
    nop = e.lab("nopub")
    e(f"s_bitcmp0_b32 s{S_W8}, 0"); e(f"s_cbranch_scc1 {nop}")
    e(f"s_lshl_b32 s{S_T0}, s{S_TC}, 13"); e(f"s_add_u32 s{S_T0}, s{S_T0}, s8")
    e("s_waitcnt lgkmcnt(0)")
    for i in range(4): e(f"v_mov_b32 v{28+i}, v{TB+i}")
    for s in range(1, 8): pk_cfma(e, 28, 30, L32R, L32I, TB+4*s, TB+4*s+2, 2, 4)
    e("s_mov_b64 exec, 0xffff")
    e(f"buffer_store_dwordx4 v[28:31], v{V_EO}, {sr(R_WS)}, s{S_T0} offen sc1")
    e("s_mov_b64 exec, -1")
    e(nop + ":")
    def eflag(e):
        sk = e.lab("nef")
        e(f"s_bitcmp0_b32 s{S_W8}, 0"); e(f"s_cbranch_scc1 {sk}")
        e(f"s_lshl2_add_u32 s{S_T0}, s{S_TC}, s9")
        e.stamp(1)
        e("s_waitcnt vmcnt(8)")
        e.stamp(3)
        set_flag(e, f"s{S_T0}", VT[0])
        e(sk + ":")
    pe = Poll(R_WS, "s9", f"s{S_TC}", 1, 17, 18)
    def eload(e):
        e.stamp(8)
        e("s_waitcnt vmcnt(0)")
        pe.check(e)
        dl = e.lab("ldone")
        for c in range(7):
            e(f"s_cmp_le_u32 s{S_TC}, {c}"); e(f"s_cbranch_scc1 {dl}")
            e(f"s_add_u32 s{S_T0}, s8, {8192*c}")
            e(f"buffer_load_dwordx4 {vr(TB+32+4*c,4)}, v{V_EO}, {sr(R_WS)}, s{S_T0} offen sc1")
        e(dl + ":")
    def carry(e):
        dn, sk = e.lab("cdone"), e.lab("lo4")
        for i in range(4): e(f"v_mov_b32 v{28+i}, 0")
        e(f"s_lshl_b32 s{S_T0}, s{S_LW}, 10")
        e(f"v_lshl_add_u32 v{t0}, v{V_LANE}, 4, s{S_T0}")
        e("s_waitcnt vmcnt(8)")
        for c in range(7):
            e(f"s_cmp_le_u32 s{S_TC}, {c}"); e(f"s_cbranch_scc1 {dn}")
            pk_cfma(e, 28, 30, L256R, L256I, TB+32+4*c, TB+34+4*c, 2, 4)
        e(dn + ":")
        e(f"s_bitcmp0_b32 s{S_W8}, 0"); e(f"s_cbranch_scc1 {sk}")
        for s in range(4): pk_cfma(e, 28, 30, L32R, L32I, TB+4*s, TB+4*s+2, 2, 4)
        for i in range(12): e(f"v_mov_b32 v{TB+i}, v{TB+16+i}")
        e(sk + ":")
        for s in range(3):
            e(f"s_lshl_b64 exec, -1, {16*(s+1)}")
            pk_cfma(e, 28, 30, L32R, L32I, TB+4*s, TB+4*s+2, 2, 4)
        e("s_mov_b64 exec, -1")
        e(f"ds_write_b128 v{t0}, v[28:31] offset:{L_CAR}")
        e.stamp(9)
    def hflag(e):
        def f(e):
            e(f"s_lshl4_add_u32 s{S_T0}, s{S_TC}, s{S_CB}")
            e(f"s_lshl2_add_u32 s{S_T0}, s{S_T0}, {WS_FH}")
            set_flag(e, f"s{S_T0}", VT[0])
        e.only(4, f)
    def touch_wo(r):
        def f(e):
            if r is None:
                e(f"s_lshr_b32 s{S_T1}, s{S_A}, 2"); e(f"s_lshl_b32 s{S_T1}, s{S_T1}, 19")
                touch_round(e, R_B, 0, S_T1)
            else: touch_round(e, R_B, r << 19)
        return f
    def iss(e):
        e(f"s_lshl_b32 s{S_K1}, s{S_KI}, 17")
        e(f"s_lshl_b32 s{S_K0}, s{S_KI}, 14"); e(f"s_add_u32 s{S_K0}, s{S_K0}, s{S_X1}")
        dma4(e, [AD+4, AD+5, AD+6, AD+7], R_B, S_K1, S_M0A)
        dma4(e, [AD]*4, R_WS, S_K0, S_M0B, "sc1")
        e(f"s_add_u32 s{S_KI}, s{S_KI}, 2"); e(f"s_and_b32 s{S_KI}, s{S_KI}, 15")
        slot_adv(e)
    po = Poll(R_WS, "s7", 64, 1, 17, 18)
    def opre(e):
        sk = e.lab("nopre")
        e("s_waitcnt vmcnt(8)")
        po.test(e)
        e(f"s_cbranch_scc1 {sk}")
        lp = e.lab("opre")
        e(lp + ":"); iss(e)
        e(f"s_cmp_lg_u32 s{S_SLOT}, 0x10000"); e(f"s_cbranch_scc1 {lp}")
        e(sk + ":")
    e.stamp(4)
    hb = {fx-1: pe.issue, fx+hfl: hflag}
    if cfg.pf == 1:
        for r in range(4): hb[2+r] = both(hb[2+r], touch_wo(r)) if 2+r in hb else touch_wo(r)
    elif cfg.pf == 2: hb[5] = touch_wo(None)
    attention(e, "hi", hm={0: eflag, fx: carry, 7: opre}, hb=hb, he={fx-1: eload, 6: po.issue})
    e.stamp(5)
    att_finish(e, 1)
    e.stamp(6)
    late(e, po, iss)
    e("s_add_u32 s7, s7, 256")
    gemm_loader(e, 14, iss, {0: o_flag(1, 8), 5: both(lambda e: e(f"s_or_b32 s{S_KI}, s{S_KI}, 1"), po.load), 6: both(lambda e: e("s_waitcnt vmcnt(8)"), po.check)})
    e("s_barrier")
    e(f"s_branch {lend}")
    e.flush()
    e(lend + ":")


def generate(cfg, header):
    e = E(cfg)
    k = NAME + "_kernel"
    e.L.append(header.rstrip("\n"))
    e.L.append(f"; @launch grid=(256,1,1) block=(512,1,1) lds={LDS_BYTES}")
    e.L.append('.amdgcn_target "amdgcn-amd-amdhsa--gfx950"')
    e.L += [".text", f".globl {k}", ".p2align 8", f".type {k},@function", k + ":"]
    e("s_cmp_ge_u32 s2, 256"); e("s_cbranch_scc1 L_exit")
    if cfg.diag == 12: e.stamp(11)
    e("s_load_dwordx16 s[4:19], s[0:1], 0")
    e("s_load_dwordx16 s[20:35], s[0:1], 64")
    e("s_load_dwordx2 s[36:37], s[0:1], 128")
    e("v_lshrrev_b32 v1, 6, v0")
    e("v_and_b32 v0, 63, v0")
    e(f"v_readfirstlane_b32 s{S_W8}, v1")
    x, j, g, u = S_T0, S_T1, S_T3, S_T2
    e(f"s_and_b32 s{x}, s2, 7"); e(f"s_lshr_b32 s{j}, s2, 3")
    if cfg.codepf:
        e("s_getpc_b64 s[100:101]")
        e("s_and_b32 s100, s100, 0xffffff00")
        e(f"s_lshl_b32 s{u}, s{j}, 10")
        e(f"v_and_b32 v2, 7, v0")
        e(f"v_lshl_add_u32 v2, v2, 7, s{u}")
        e(f"v_min_u32 v2, L_exit-{k}, v2")
        e.only(6, lambda e: e("global_load_dword v7, v2, s[100:101]"))
    e(f"s_and_b32 s{S_B}, s{j}, 7")
    e(f"s_and_b32 s{S_LW}, s{S_W8}, 3")
    for r in (17, 22, 23, 24, 25, 26, 27, 28, 29, 35, 36): e(f"v_mov_b32 v{r}, 0")
    e("s_waitcnt lgkmcnt(0)")
    if not cfg.mixed:
        e(f"s_mov_b32 s{S_CI}, s{j}")
        if cfg.alt & 1: e(f"s_and_b32 s{g}, s{x}, 1"); e(f"s_lshr_b32 s{x}, s{x}, 1")
        else: e(f"s_lshr_b32 s{g}, s{x}, 2"); e(f"s_and_b32 s{x}, s{x}, 3")
        if cfg.alt & 2: e(f"s_xor_b32 s{g}, s{g}, 1")
        e(f"s_lshr_b32 s{j}, s{j}, 3")
        e(f"s_lshl2_add_u32 s{S_A}, s{x}, s{j}")
        e(f"s_add_u32 s{S_ROT}, s{j}, s{S_B}")
        e(f"s_lshl2_add_u32 s{S_KI}, s{j}, s{x}")
        e(f"s_and_b32 s{S_TC}, s{S_A}, 7")
        e(f"s_lshr_b32 s{x}, s{x}, 1"); e(f"s_lshl3_add_u32 s{S_CB}, s{x}, s{S_B}")
        e(f"s_cmp_lg_u32 s{g}, 0")
        e(f"s_cmov_b32 s{S_TC}, s{S_A}"); e(f"s_cmov_b32 s{S_CB}, s{S_B}"); e(f"s_cmov_b32 s{S_ROT}, s{S_KI}")
    else:
        e(f"s_lshr_b32 s{g}, s{j}, 4"); e(f"s_and_b32 s{S_CI}, s{j}, 15")
        e(f"s_lshr_b32 s{u}, s{S_CI}, 3")
        e(f"s_lshl1_add_u32 s{S_A}, s{x}, s{u}")
        e(f"s_lshl3_add_u32 s{S_KI}, s{u}, s{x}")
        e(f"s_and_b32 s{u}, s{j}, 3"); e(f"s_lshr_b32 s{j}, s{S_CI}, 2")
        e(f"s_add_u32 s{S_ROT}, s{j}, s{u}")
        e(f"s_lshr_b32 s{S_CNT}, s{x}, 1"); e(f"s_and_b32 s{x}, s{x}, 1")
        e(f"s_cmp_lg_u32 s{g}, 0")
        e(f"s_cselect_b32 s{S_TC}, s{S_CNT}, s{x}"); e(f"s_cselect_b32 s{S_CB}, s{x}, s{S_CNT}"); e(f"s_cmov_b32 s{S_ROT}, s{S_KI}")
        e(f"s_lshl2_add_u32 s{S_TC}, s{S_TC}, s{j}"); e(f"s_lshl2_add_u32 s{S_CB}, s{S_CB}, s{u}")
    if cfg.prof:
        for i in range(NPROF): e(f"s_mov_b32 s{S_PROF+i}, 0")
    if cfg.diag != 12: e.stamp(11, True); e.stamp(0)
    if cfg.probe >= 0:
        e(f"s_lshl3_add_u32 s{S_CNT}, s2, s{S_W8}"); e(f"s_cmp_lg_u32 s{S_CNT}, 64"); e("s_cbranch_scc1 L_noprobe")
        e(f"v_lshlrev_b32 v2, {cfg.pstride}, v0"); e(f"v_add_u32 v2, {cfg.poff}, v2")
        if cfg.pwarm:
            e(f"global_load_dword v3, v2, s[{cfg.probe}:{cfg.probe+1}] offset:{cfg.pwarm}"); e("s_waitcnt vmcnt(0)")
        e("s_memrealtime s[100:101]"); e("s_waitcnt lgkmcnt(0)"); e(f"s_mov_b32 s{S_CNT}, s100")
        e(f"global_load_dword v3, v2, s[{cfg.probe}:{cfg.probe+1}]"); e("s_waitcnt vmcnt(0)")
        e("s_memrealtime s[100:101]"); e("s_waitcnt lgkmcnt(0)")
        e(f"s_sub_u32 s{S_CNT}, s100, s{S_CNT}"); e(f"s_mul_i32 s{S_CNT}, s{S_CNT}, 50"); e(f"s_add_u32 s{S_PROF+1}, s{S_PROF+1}, s{S_CNT}")
        e("L_noprobe:")
        e("s_memrealtime s[100:101]"); e("s_waitcnt lgkmcnt(0)")
        e(f"s_sub_u32 s{S_CNT}, s100, s{S_PROF}"); e(f"s_cmp_lt_u32 s{S_CNT}, 1500"); e("s_cbranch_scc1 L_noprobe")
    e.srd(R_WS, P_WS, WS_SIZE); e.srd(R_OUT, P_OUT, 0x1000000); e.srd(R_DBG, P_DBG, 256)
    e(f"s_cmp_lg_u32 s{g}, 0"); e("s_cbranch_scc1 L_group2")
    e.grp = 1; group1(e)
    if cfg.diag == 10: e("s_waitcnt vmcnt(0)"); e.stamp(10)
    e("s_branch L_fin")
    e("L_group2:")
    e.grp = 2; group2(e)
    if cfg.diag == 10: e("s_waitcnt vmcnt(0)"); e.stamp(10)
    assert not e.outl
    e("L_fin:")
    if cfg.diag >= 0:
        e(f"s_cmp_lg_u32 s{S_W8}, {cfg.dwave}"); e("s_cbranch_scc1 L_exit")
        e(f"s_add_u32 s{S_PROF+1}, s{S_PROF+1}, 10000")
        e("L_diag:")
        e("s_memrealtime s[100:101]"); e("s_waitcnt lgkmcnt(0)")
        e(f"s_sub_u32 s{S_T0}, s100, s{S_PROF+1}"); e(f"s_cmp_lt_i32 s{S_T0}, 0"); e("s_cbranch_scc1 L_diag")
    if cfg.prof:
        e("s_waitcnt vmcnt(0)")
        e.stamp(10); e.stamp(12, True)
        e(f"s_lshl3_add_u32 s{S_T0}, s2, s{S_W8}")
        e(f"s_lshl_b32 s{S_T0}, s{S_T0}, 6"); e(f"s_add_u32 s{S_T0}, s{S_T0}, {WS_PROF}")
        e("s_mov_b64 exec, 1")
        for i in range(NPROF):
            e(f"v_mov_b32 v1, s{S_PROF+i}")
            e(f"buffer_store_dword v1, off, {sr(R_WS)}, s{S_T0} offset:{4*i}")
    e("L_exit:")
    e("s_endpgm")
    e.L += ['.section .rodata,"a"', ".p2align 6", f".amdhsa_kernel {k}",
            "  .amdhsa_next_free_vgpr 256", "  .amdhsa_next_free_sgpr 102", "  .amdhsa_accum_offset 256",
            "  .amdhsa_group_segment_fixed_size 0", "  .amdhsa_kernarg_size 136", "  .amdhsa_user_sgpr_count 2",
            "  .amdhsa_user_sgpr_kernarg_segment_ptr 1", "  .amdhsa_system_sgpr_workgroup_id_x 1",
            "  .amdhsa_float_denorm_mode_32 3", ".end_amdhsa_kernel"]
    return "\n".join(e.L) + "\n"


def header():
    L = []
    for l in open(f"cdna_kernels/{NAME}.s.ref"):
        if not l.startswith(";"): break
        if "@launch" in l or "Override launch" in l or "grid=ceil" in l: continue
        L.append(l)
    return "".join(L)


if __name__ == "__main__":
    cfg = Cfg()
    out = f"cdna_kernels/{NAME}.s"
    for a in sys.argv[1:]:
        if a.startswith("out="): out = a[4:]
        else:
            k, v = a.split("="); assert hasattr(cfg, k), k; setattr(cfg, k, int(v))
    open(out, "w").write(generate(cfg, header()))
    print("wrote", out)
```

```python
from mb3 import *
def rep(fn, n): return "\n".join(fn(i) for i in range(n))
def mk(name, nst, dist, trB=False, lag=1, prio=0, front=2):
    BM = BN = 128; wm = wn = 2
    rows = BM + BN
    stage = rows * 128
    nload_w = 4
    ninstr = rows // 8 // nload_w
    setup = f"""
    s_mov_b32 s8, s6
    s_mov_b32 s9, s7
    s_mov_b32 s10, 0x4000000
    s_mov_b32 s11, 0x20000
    v_and_b32 v3, 63, v0
    v_lshrrev_b32 v4, 3, v3
    v_and_b32 v5, 7, v3
    v_lshrrev_b32 v6, 1, v4
    v_xor_b32 v5, v5, v6
    v_lshlrev_b32 v5, 4, v5
    s_and_b32 s35, s2, 7
    s_lshr_b32 s36, s2, 3
    s_and_b32 s36, s36, 3
    s_lshl_b32 s35, s35, 11
    s_lshl_b32 s36, s36, 9
    s_add_u32 s31, s35, s36
    s_and_b32 s37, s20, {nload_w-1}
    s_mul_i32 s30, s37, {ninstr*8}
    s_add_u32 s31, s31, s30
    v_add_u32 v6, s31, v4
    v_lshlrev_b32 v6, 11, v6
    v_add_u32 v6, v6, v5
    s_mul_i32 s32, s37, {ninstr*1024}
    v_and_b32 v7, 31, v3
    v_lshrrev_b32 v8, 5, v3
    v_lshrrev_b32 v9, 1, v7
    v_and_b32 v9, 7, v9
    v_xor_b32 v8, v8, v9
    v_lshlrev_b32 v8, 4, v8
    v_lshl_add_u32 v8, v7, 7, v8
    s_and_b32 s38, s20, 3
    s_and_b32 s39, s38, 1
    s_lshr_b32 s40, s38, 1
    s_mul_i32 s39, s39, {wm*4096}
    s_mul_i32 s40, s40, {wn*4096}
    s_add_u32 s40, s40, {BM*128}
"""
    ks = [0, 1, 2, 3]
    for s in ks:
        setup += f"    v_xor_b32 v{24+s}, {s*32}, v8\n    v_add_u32 v{28+s}, s40, v{24+s}\n    v_add_u32 v{24+s}, s39, v{24+s}\n"
        if trB: setup += f"    v_lshlrev_b32 v{28+s}, 3, v3\n    v_add_u32 v{28+s}, s40, v{28+s}\n    v_add_u32 v{28+s}, {s*1024}, v{28+s}\n"
    setup += rep(lambda i: f"    v_add_u32 v{10+i}, {i*8*2048}, v6", ninstr) + "\n"
    ACC = 128
    setup += rep(lambda i: f"    v_mov_b32 v{ACC+i}, 0", 128) + "\n"
    nb = 2 if dist == 1 else 4
    FA = [192 + 16*i for i in range(nb)]
    for s in ks:
        setup += f"    v_add_u32 v{80+s}, 0x10000, v{24+s}\n    v_add_u32 v{84+s}, 0x10000, v{28+s}\n"
        setup += f"    v_add_u32 v{88+s}, 0x20000, v{24+s}\n    v_add_u32 v{92+s}, 0x20000, v{28+s}\n"
    def rd(buf, st, s):
        L = []
        for t in (0, 2, 3, 1):
            isA = t < wm
            off = st*stage + (t if isA else t-wm)*4096
            base = (24 if isA else 28) + s
            if off >= 0x20000: off -= 0x20000; base = (88 if isA else 92) + s
            elif off >= 0x10000: off -= 0x10000; base = (80 if isA else 84) + s
            r = FA[buf] + 4*t
            if trB and not isA:
                L.append(f"    ds_read_b64_tr_b16 v[{r}:{r+1}], v{base} offset:{off}")
                L.append(f"    ds_read_b64_tr_b16 v[{r+2}:{r+3}], v{base} offset:{off+512}")
            else:
                L.append(f"    ds_read_b128 v[{r}:{r+3}], v{base} offset:{off}")
        return L
    def mf(buf):
        L = []
        for i, j in ((0,0),(0,1),(1,1),(1,0)):
                a = FA[buf] + 4*i; b = FA[buf] + 4*(wm+j); c = ACC + 16*(i*wn+j)
                L.append(f"    v_mfma_f32_32x32x16_bf16 v[{c}:{c+15}], v[{a}:{a+3}], v[{b}:{b+3}], v[{c}:{c+15}]")
        return L
    def dma(st, kstep):
        L = []
        for i in range(ninstr):
            L.append(f"    s_add_u32 m0, s32, {st*stage + i*1024}\n    s_movk_i32 s34, {(kstep%16)*128}\n    buffer_load_dwordx4 v{10+i}, s[8:11], s34 offen lds")
        return L
    nsteps = 16 if nst != 5 else 15
    comp = []; load = []
    nrd = 6 if trB else 4
    g = 0
    for it in range(nsteps):
        for s in ks:
            gn = g + dist
            itn, sn = gn // 4, gn % 4
            oth = rd(gn % nb, itn % nst, sn)
            m = mf(g % nb)
            comp.append(f"    s_waitcnt lgkmcnt({nrd*(dist-1)})")
            comp.append(m[0])
            if sn == 0:
                if lag == 0: comp.append("    s_waitcnt lgkmcnt(0)")
                comp.append("    s_barrier")
            k = 0
            for i in range(4):
                if i: comp.append(m[i])
                e = min(len(oth), (len(oth)*(i+1) + front-1)//front)
                comp += oth[k:e]; k = e
            g += 1
        load.append(f"    s_waitcnt vmcnt({ninstr*(nst-2-lag)})")
        load.append("    s_barrier")
        load += dma((it - lag) % nst, it + nst - lag)
    pro = []
    for st in range(nst-lag): pro += dma(st, st)
    setup += "    s_cmp_lt_u32 s20, 4\n    s_cbranch_scc1 5f\n" + "\n".join(pro) + "\n5:\n"
    body = "    s_cmp_ge_u32 s20, 4\n    s_cbranch_scc1 1f\n" + "\n".join(comp) + "\n    s_branch 2f\n1:\n" + "\n".join(load) + "\n2:\n"
    if prio == 1: setup += "    s_cmp_lt_u32 s20, 4\n    s_cbranch_scc1 6f\n    s_setprio 1\n6:\n"
    if prio == 2: setup += "    s_cmp_ge_u32 s20, 4\n    s_cbranch_scc1 6f\n    s_setprio 1\n6:\n"
    setup += "    s_waitcnt vmcnt(0)\n"
    return dict(name=name, setup=setup, body=body, iters=8, div=nsteps*512/100.0, lds=nst*stage, configs=[(256, 512)], vgpr=256)

def mk16(name, order, trB=True, nst=4, spread=28):
    t = mk(name, nst, 2, trB)
    ninstr = 8; stage = 32768
    setup = t['setup']
    extra = """
    v_and_b32 v7, 15, v3
    v_lshrrev_b32 v8, 4, v3
    v_bfe_u32 v9, v3, 1, 3
    v_xor_b32 v8, v8, v9
    v_lshlrev_b32 v8, 4, v8
    v_lshl_add_u32 v8, v7, 7, v8
    v_add_u32 v24, s39, v8
    v_xor_b32 v25, 64, v24
    v_add_u32 v26, s40, v8
    v_xor_b32 v27, 64, v26
    v_lshlrev_b32 v28, 3, v3
    v_add_u32 v28, s40, v28
"""
    setup += extra
    ACC = 32; FB = [96, 160]
    setup += rep(lambda i: f"    v_mov_b32 v{ACC+i}, 0", 64+128) + "\n"
    def rd(buf, off):
        A = []; B = []
        for tt in range(4):
            for s in range(2):
                r = FB[buf] + 8*tt + 4*s
                A.append([f"    ds_read_b128 v[{r}:{r+3}], v{24+s} offset:{off+2048*tt}"])
                r += 32
                if trB: B.append([f"    ds_read_b64_tr_b16 v[{r+2*q}:{r+2*q+1}], v28 offset:{off+2048*tt+1024*s+512*q}" for q in range(2)])
                else: B.append([f"    ds_read_b128 v[{r}:{r+3}], v{26+s} offset:{off+2048*tt}"])
        L = A[0]+A[1]
        for x in B: L += x
        for x in A[2:]: L += x
        return L
    def mf(buf):
        L = []
        for s, i, j in order:
            a = FB[buf] + 8*i + 4*s; b = FB[buf] + 32 + 8*j + 4*s; c = ACC + 4*(4*i+j)
            L.append(f"    v_mfma_f32_16x16x32_bf16 v[{c}:{c+3}], v[{a}:{a+3}], v[{b}:{b+3}], v[{c}:{c+3}]")
        return L
    comp = []
    for it in range(16):
        m = mf(it & 1); nx = (it+1) % 4
        oth = rd(1-(it&1), (nx & 1)*32768)
        pre = ["    s_barrier"]
        if nx & 1 == 0: pre += [f"    v_xor_b32 v{r}, 0x10000, v{r}" for r in (24,25,26,27,28)]
        oth = pre + oth
        comp.append("    s_waitcnt lgkmcnt(0)")
        k = 0
        for i, x in enumerate(m):
            comp.append(x)
            e = min(len(oth), (len(oth)*(i+1) + spread-1)//spread)
            comp += oth[k:e]; k = e
    b = t['body']
    i0 = b.index("1f\n") + 3; i1 = b.index("\n    s_branch 2f")
    t['body'] = b[:i0] + "\n".join(comp) + b[i1:]
    t['setup'] = setup
    return t
snake = [(s,i,(jj if i%2==0 else 3-jj)) for s in range(2) for i in range(4) for jj in range(4)]
chain = [(s,i,(jj if i%2==0 else 3-jj)) for i in range(4) for jj in range(4) for s in range(2)]
chain2 = [((s if (4*i+jj)%2==0 else 1-s),i,(jj if i%2==0 else 3-jj)) for i in range(4) for jj in range(4) for s in range(2)]

import re, copy
T = []
base = mk16("full", chain2, trB=False, spread=24)
def var(name, fn):
    t = copy.deepcopy(base); t['name'] = name; fn(t); T.append(t)
def drop(pat, keep=None):
    def f(t):
        n = [0]
        out = []
        for l in t['body'].split("\n"):
            if re.search(pat, l):
                n[0] += 1
                if keep and n[0] % keep[1] < keep[0]: out.append(l)
                else: out.append("    s_nop 0")
            else: out.append(l)
        t['body'] = "\n".join(out).replace("vmcnt(8)", "vmcnt(4)" if keep else "vmcnt(8)")
    return f
pre = "    s_barrier\n" + rep(lambda i: f"    ds_read_b128 v[{96+4*i}:{99+4*i}], v24 offset:{i*1024}\n    s_waitcnt lgkmcnt(0)", 32) + "\n"
var("full", lambda t: None)
def noswz(t): t['setup'] = t['setup'].replace("v_xor_b32 v5, v5, v6             ; (approx) swizzle", "s_nop 0")
var("noswz", noswz)
def lin(t):
    st = t['setup']
    k = st.index("    s_cmp_lt_u32 s20, 4\n    s_cbranch_scc1 5f")
    add = "    s_and_b32 s42, s2, 31\n    s_lshl_b32 s42, s42, 19\n    s_lshl_b32 s43, s37, 13\n    s_add_u32 s42, s42, s43\n" + rep(lambda i: f"    v_lshl_add_u32 v{10+i}, v3, 4, s42\n    v_add_u32 v{10+i}, {1024*i}, v{10+i}", 8) + "\n"
    t['setup'] = st[:k] + add + st[k:]
    f = lambda m: f"s_mov_b32 s34, {int(m.group(1))//128*32768}"
    t['setup'] = re.sub(r"s_movk_i32 s34, (\d+)", f, t['setup']); t['body'] = re.sub(r"s_movk_i32 s34, (\d+)", f, t['body'])
var("linear", lin)
def same(t): t['setup'] = t['setup'].replace("s_and_b32 s36, s36, 3", "s_mov_b32 s36, 0")
var("samerows", same)
def l1hit(t):
    t['body'] = re.sub(r"s_movk_i32 s34, (\d+)", "s_movk_i32 s34, 0", t['body'])
    t['body'] = re.sub(r"buffer_load_dwordx4 v1\d", "buffer_load_dwordx4 v10", t['body'])
var("l1hit", l1hit)
def oob(t): t['setup'] += "    s_mov_b32 s10, 0\n"
var("oobzero", oob)
var("nodma", drop("buffer_load"))
for t in T: t['iters'] = 4
main3(T, "t33")
```
